```python
import torch

def _softmax(x, axis=-1):
    return torch.softmax(x, dim=axis)

def _gelu(x):
    return torch.nn.functional.gelu(x, approximate='tanh')

def _silu(x):
    return torch.nn.functional.silu(x)

def _sigmoid(x):
    return torch.sigmoid(x)

def _layernorm(x, axis=-1, eps=1e-05):
    m = x.mean(dim=axis, keepdim=True)
    v = x.var(dim=axis, keepdim=True, unbiased=False)
    return (x - m) / torch.sqrt(v + eps)

def _scatter_add(tgt, idx, src, axis=0):
    return tgt.clone().index_add_(axis, idx, src)

def _segment_sum(src, seg, n):
    out = torch.zeros((n,) + src.shape[1:], dtype=src.dtype)
    return out.index_add_(0, seg, src)

def _pad(x, pw):
    flat = tuple((v for pair in reversed(pw) for v in pair))
    return torch.nn.functional.pad(x, flat)
kernel_name = 'adaLN_cond__gqa_block_cached__glu_gated_bilinear__prompt'

def setup_inputs():

    _w = lambda a: (lambda t: t.to(torch.bfloat16) if t.is_floating_point() else t)(torch.as_tensor(a))

    def _A_setup():
        B, Sq, D = (1, 2048, 448)
        Hq, Hkv, Sk, Dh = (16, 8, 2048, 256)
        assert Hq % Hkv == 0, (Hq, Hkv)
        return {'x': _w((lambda *s: torch.randn(*s, dtype=torch.bfloat16) * 0.05)(B, Sq, D)), 'k_cache': _w((lambda *s: torch.randn(*s, dtype=torch.bfloat16) * 0.8)(B, Hkv, Sk, Dh)), 'v_cache': _w((lambda *s: torch.randn(*s, dtype=torch.bfloat16) * 3.2)(B, Hkv, Sk, Dh)), 'wq': _w((lambda *s: torch.randn(*s, dtype=torch.bfloat16) * 0.8)(D, Hq * Dh) * D ** (-0.5)), 'wo': _w((lambda *s: torch.randn(*s, dtype=torch.bfloat16) * 3.2)(Hq * Dh, D) * (Hq * Dh) ** (-0.5))}
    _A_in = _A_setup()

    def _B_setup():
        B, S, D, F = (1, 2048, 448, 1792)
        return {'x': _w((lambda *s: torch.randn(*s, dtype=torch.bfloat16) * 0.05)(B, S, D)), 'w_gate': _w((lambda *s: torch.randn(*s, dtype=torch.bfloat16) * 3.2)(D, F) * D ** (-0.5)), 'w_up': _w((lambda *s: torch.randn(*s, dtype=torch.bfloat16) * 3.2)(D, F) * D ** (-0.5)), 'w_down': _w((lambda *s: torch.randn(*s, dtype=torch.bfloat16) * 3.2)(F, D) * F ** (-0.5))}
    _B_in = _B_setup()
    return {'A_x': _A_in['x'], 'A_k_cache': _A_in['k_cache'], 'A_v_cache': _A_in['v_cache'], 'A_wq': _A_in['wq'], 'A_wo': _A_in['wo'], 'B_x': _B_in['x'], 'B_w_gate': _B_in['w_gate'], 'B_w_up': _B_in['w_up'], 'B_w_down': _B_in['w_down'], 'c': _w((lambda *s: torch.randn(*s, dtype=torch.bfloat16) * 0.4)(1, 448) * 8.0), 'w_mod': _w((lambda *s: torch.randn(*s, dtype=torch.bfloat16) * 0.4)(448, 6 * 448) * 448 ** (-0.5) * 8.0)}

def reference(A_x, A_k_cache, A_v_cache, A_wq, A_wo, B_x, B_w_gate, B_w_up, B_w_down, c, w_mod):

    def _A_ref(x, k_cache, v_cache, wq, wo):
        B, Sq, D = x.shape
        Hq, Dh = (16, 256)
        Hkv = k_cache.shape[1]
        rep = Hq // Hkv
        q = (lambda x, *d: x.permute(*d))((x @ wq).reshape(B, Sq, Hq, Dh), 0, 2, 1, 3)
        k = (lambda x, n, axis: torch.repeat_interleave(x, n, dim=axis))(k_cache, rep, axis=1)
        v = (lambda x, n, axis: torch.repeat_interleave(x, n, dim=axis))(v_cache, rep, axis=1)
        scores = torch.einsum('bhqd,bhkd->bhqk', q, k) * Dh ** (-0.5)
        p = _softmax(scores, axis=-1)
        o = torch.einsum('bhqk,bhkd->bhqd', p, v)
        return (lambda x, *d: x.permute(*d))(o, 0, 2, 1, 3).reshape(B, Sq, Hq * Dh) @ wo

    def _B_ref(x, w_gate, w_up, w_down):
        g = torch.einsum('bsd,df->bsf', x, w_gate)
        u = torch.einsum('bsd,df->bsf', x, w_up)
        h = g * u
        return torch.einsum('bsf,fd->bsd', h, w_down)
    x = A_x
    mod = (_silu(c) @ w_mod).reshape(c.shape[0], 6, 1, -1)
    sa, ca, ga, sb, cb, gb = (mod[:, 0].clone(), mod[:, 1].clone(), mod[:, 2].clone(), mod[:, 3].clone(), mod[:, 4].clone(), mod[:, 5].clone())
    h = _layernorm(x, axis=-1) * (1 + ca) + sa
    x = x + ga * _A_ref(h, A_k_cache, A_v_cache, A_wq, A_wo)
    h = _layernorm(x, axis=-1) * (1 + cb) + sb
    x = x + gb * _B_ref(h, B_w_gate, B_w_up, B_w_down)
    return x
```

```python
from em import *
import math, struct
def f2u(x): return struct.unpack('<I', struct.pack('<f', x))[0]
C0 = math.log2(math.e) / 16.0
WS_MOD1, WS_GA, WS_S2, WS_SB, WS_GB = 0, 4096, 6144, 8192, 10240
WS_XHAT, WS_H2, WS_X1, WS_HH, WS_PART = 0x10000, 0x200000, 0x400000, 0x800000, 0x1000000
WS_PART2 = 0x7000000
WS_DBG = 0x4000000
ACT_BYTES = 2048 * 448 * 2
ARG = dict(x=0, k=8, v=16, wq=24, wo=32, bx=40, wg=48, wu=56, wd=64, c=72, wmod=80, out=88, dbg=96, ws=104)

def srd(e, d, lo, hi, nbytes):
    e(f"s_mov_b32 s{d}, s{lo}")
    e(f"s_and_b32 s{d+1}, s{hi}, 0xffff")
    e(f"s_mov_b32 s{d+2}, {nbytes}")
    e(f"s_mov_b32 s{d+3}, 0x20000")

def srd_off(e, d, lo, hi, off, nbytes):
    e(f"s_add_u32 s{d}, s{lo}, {off}")
    e(f"s_addc_u32 s{d+1}, s{hi}, 0")
    e(f"s_and_b32 s{d+1}, s{d+1}, 0xffff")
    e(f"s_mov_b32 s{d+2}, {nbytes}")
    e(f"s_mov_b32 s{d+3}, 0x20000")

def bfround(e, dst, src):
    e(f"v_cvt_pk_bf16_f32 {dst}, {src}, {src}")
    e(f"v_and_b32 {dst}, 0xffff0000, {dst}")

def kernel_head(name):
    return f".globl {name}\n.p2align 8\n.type {name},@function\n{name}:\n"

def kernel_desc(name, nvgpr, nsgpr, accum):
    return f""".amdhsa_kernel {name}
  .amdhsa_next_free_vgpr {nvgpr}
  .amdhsa_next_free_sgpr {nsgpr}
  .amdhsa_accum_offset {accum}
  .amdhsa_group_segment_fixed_size 0
  .amdhsa_kernarg_size 112
  .amdhsa_user_sgpr_count 2
  .amdhsa_user_sgpr_kernarg_segment_ptr 1
  .amdhsa_system_sgpr_workgroup_id_x 1
.end_amdhsa_kernel
"""
```

```python
import re

def v(a, n=1): return f"v{a}" if n == 1 else f"v[{a}:{a+n-1}]"
def a(x, n=1): return f"a{x}" if n == 1 else f"a[{x}:{x+n-1}]"
def s(x, n=1): return f"s{x}" if n == 1 else f"s[{x}:{x+n-1}]"

REG_RE = re.compile(r'\b([vas])(\d+)\b|\b([vas])\[(\d+):(\d+)\]|\b(vcc|exec|m0|scc)\b')
TRANS = ('v_exp_f32', 'v_log_f32', 'v_rcp_f32', 'v_rsq_f32', 'v_sqrt_f32', 'v_sin_f32', 'v_cos_f32')

def regs_of(op):
    out = []
    for m in REG_RE.finditer(op):
        if m.group(1): out.append((m.group(1), int(m.group(2))))
        elif m.group(3): out += [(m.group(3), i) for i in range(int(m.group(4)), int(m.group(5)) + 1)]
        else: out.append((m.group(6), 0))
    return out

def split_ops(rest):
    ops, depth, cur = [], 0, ''
    for ch in rest:
        if ch == '[': depth += 1
        if ch == ']': depth -= 1
        if ch == ',' and depth == 0: ops.append(cur.strip()); cur = ''
        else: cur += ch
    if cur.strip(): ops.append(cur.strip())
    return ops

class Ins:
    def __init__(self, text):
        self.text = text
        t = text.split(';')[0].strip()
        self.label = t.endswith(':')
        self.mn = t.split()[0] if t else ''
        self.w, self.r = [], []
        self.kind = 'none'
        self.states = 0
        if not t or self.label or t.startswith('.'):
            return
        self.states = 1
        mn = self.mn
        rest = t[len(mn):].strip()
        ops = split_ops(rest)
        R = [regs_of(o) for o in ops]
        if mn == 's_nop':
            self.states = int(ops[0], 0) + 1; self.kind = 'salu'
        elif mn.startswith('v_mfma'):
            self.kind = 'mfma'; self.w = R[0]; self.ab = R[1] + R[2]; self.c = R[3]; self.r = self.ab + self.c
            self.passes = 8 if '32x32x16' in mn else 4
        elif mn.startswith('v_cmp'):
            self.kind = 'valu'; self.w = R[0]; self.r = sum(R[1:], [])
        elif mn.startswith('v_permlane') and 'swap' in mn:
            self.kind = 'valu'; self.w = R[0] + R[1]; self.r = R[0] + R[1]
        elif mn.startswith('v_'):
            self.kind = 'valu'; self.w = R[0]; self.r = sum(R[1:], [])
            if mn.startswith(('v_fmac', 'v_dot2c')) or '_dpp' in mn or 'mixhi' in mn or 'mixlo' in mn: self.r = self.r + R[0]
            if mn.startswith(('v_add_co', 'v_sub_co', 'v_addc_co')): self.w = R[0] + R[1]; self.r = sum(R[2:], [])
        elif mn.startswith('ds_read') or mn.startswith('ds_bpermute') or mn.startswith('ds_swizzle'):
            self.kind = 'ds'; self.w = R[0]; self.r = sum(R[1:], [])
        elif mn.startswith('ds_'):
            self.kind = 'ds'; self.r = sum(R, [])
        elif mn.startswith(('buffer_load', 'global_load')):
            self.kind = 'vmem'
            if re.search(r'\blds\b', rest) or '_lds_' in mn:
                self.r = sum(R, []) + [('m0', 0)]; self.dma = True
            else:
                self.w = R[0]; self.r = sum(R[1:], [])
        elif mn.startswith(('buffer_', 'global_')):
            self.kind = 'vmem'; self.r = sum(R, [])
            self.store_data = (R[0] if mn.startswith('buffer_') else R[1]) if ('x4' in mn or 'x3' in mn) else []
        elif mn.startswith('s_'):
            self.kind = 'salu'
            if mn.startswith(('s_cmp', 's_cbranch', 's_branch', 's_waitcnt', 's_barrier', 's_endpgm', 's_setprio', 's_sleep', 's_bitcmp')):
                self.r = sum(R, [])
            else:
                self.w = R[0] if R else []; self.r = sum(R[1:], [])
        else:
            raise ValueError('unknown instr ' + text)

def check_hazards(lines, name=''):
    ins = [Ins(l) for l in lines]
    pos = 0
    lastw = {}
    lastc = {}
    lastst = {}
    errs = []
    for i in ins:
        if i.states == 0: continue
        def dist(p): return pos - p
        def need(reg, n, why):
            if reg in lastw:
                p, k, pi = lastw[reg]
                if dist(p) < n: errs.append(f"{name}: {why}: need {n} have {dist(p)}: '{pi.text.strip()}' -> '{i.text.strip()}'")
        for reg in set(i.r):
            if reg not in lastw: continue
            p, k, pi = lastw[reg]
            if k == 'valu':
                if reg[0] in 'va':
                    if i.kind == 'mfma': need(reg, 2, 'valu->mfma')
                    if i.kind == 'valu':
                        if i.mn.startswith('v_permlane'): need(reg, 2, 'valu->permlane')
                        if i.mn.startswith(('v_readfirstlane', 'v_readlane')): need(reg, 1, 'valu->readlane')
                        if '_dpp' in i.mn: need(reg, 2, 'valu->dpp')
                        if pi.mn.split('_e')[0] in TRANS and i.mn.split('_e')[0] not in TRANS: need(reg, 1, 'trans->valu')
                        if ('op_sel' in pi.text and 'mix' not in pi.mn) or 'sdwa' in pi.mn or 'mixhi' in pi.mn or 'mixlo' in pi.mn: need(reg, 1, 'opsel->valu')
                    if i.kind in ('vmem', 'ds') and pi.mn.split('_e')[0] in TRANS: need(reg, 1, 'trans->mem')
                else:
                    if i.kind == 'vmem': need(reg, 5, 'valu sgpr->vmem')
                    if i.kind == 'valu': need(reg, 2, 'valu sgpr->valu')
                    if i.kind == 'salu' and reg[0] == 's': need(reg, 1, 'valu sgpr->salu(pad)')
            elif k == 'mfma':
                n = {8: 12, 4: 8}[pi.passes]
                if i.kind == 'mfma':
                    if reg in i.ab: need(reg, n, 'mfma->mfma AB')
                    elif i.c != pi.w or i.passes != pi.passes: need(reg, n - 2, 'mfma->mfma C overlap')
                else: need(reg, n, 'mfma->read')
            elif k == 'salu':
                if reg == ('m0', 0) and getattr(i, 'dma', False): need(reg, 1, 'm0->dma')
        for reg in set(i.w):
            if reg in lastw:
                p, k, pi = lastw[reg]
                if k == 'mfma' and i.kind != 'mfma':
                    need(reg, {8: 12, 4: 8}[pi.passes], 'mfma->write WAW')
                if k == 'mfma' and i.kind == 'mfma' and not (i.c == pi.w):
                    need(reg, {8: 12, 4: 8}[pi.passes] - 2, 'mfma->mfma WAW(different C)')
            if i.kind in ('valu',) and reg in lastc:
                p, n, pi = lastc[reg]
                if dist(p) < n: errs.append(f"{name}: mfma C WAR need {n} have {dist(p)}: '{pi.text.strip()}' -> '{i.text.strip()}'")
            if reg in lastst:
                p, pi = lastst[reg]
                if dist(p) < 2: errs.append(f"{name}: store data WAR have {dist(p)}: '{pi.text.strip()}' -> '{i.text.strip()}'")
        pos += i.states
        for reg in i.w: lastw[reg] = (pos, i.kind, i)
        if i.kind == 'mfma':
            for reg in i.c: lastc[reg] = (pos, {8: 7, 4: 3}[i.passes], i)
        for reg in getattr(i, 'store_data', []): lastst[reg] = (pos, i)
    return errs

class Em:
    def __init__(self):
        self.lines = []
        self.lg = []
        self.vm = []
    def __call__(self, text):
        for l in text.split('\n'):
            l = l.strip()
            if l: self.lines.append(('' if l.endswith(':') else '  ') + l)
    def ds(self, text, tag=None):
        self(text); self.lg.append(tag)
    def vmem(self, text, tag=None):
        self(text); self.vm.append(tag)
    def _n(self, q, tags, mx):
        idx = [i for i, t in enumerate(q) if t in tags]
        if not idx: return None
        n = len(q) - 1 - max(idx)
        return min(n, mx)
    def wait(self, lg=(), vm=(), lg_all=False, vm_all=False):
        nl = 0 if lg_all else self._n(self.lg, set(lg), 15)
        nv = 0 if vm_all else self._n(self.vm, set(vm), 63)
        if lg_all and not self.lg: nl = None
        if vm_all and not self.vm: nv = None
        parts = []
        if nv is not None:
            parts.append(f"vmcnt({nv})"); self.vm = self.vm[len(self.vm) - nv:] if nv else []
        if nl is not None:
            parts.append(f"lgkmcnt({nl})"); self.lg = self.lg[len(self.lg) - nl:] if nl else []
        if parts: self("s_waitcnt " + ' '.join(parts))
        return bool(parts)
    def nop(self, n):
        while n > 0:
            k = min(n, 16); self(f"s_nop {k-1}"); n -= k
    def text(self): return '\n'.join(self.lines) + '\n'
```

```python
from common import *
NMOD = 84
NXH = 64
GRID = NMOD + NXH
def gen():
    e = Em()
    e(f"s_cmp_ge_u32 s2, {GRID}")
    e("s_cbranch_scc1 K0_END")
    e(f"s_load_dwordx2 s[4:5], s[0:1], {ARG['x']}")
    e(f"s_load_dwordx4 s[8:11], s[0:1], {ARG['c']}")
    e(f"s_load_dwordx2 s[6:7], s[0:1], {ARG['ws']}")
    e(f"s_cmp_ge_u32 s2, {NMOD}")
    e("s_cbranch_scc1 K0_XHAT")
    e("s_and_b32 s3, s2, 7")
    e("s_lshl_b32 s3, s3, 1")
    e("s_bfe_u32 s12, s2, 0x10003")
    e("s_add_u32 s3, s3, s12")
    e("s_and_b32 s12, s2, 0x70")
    e("s_add_u32 s3, s3, s12")
    e("s_cmp_ge_u32 s2, 80")
    e("s_cselect_b32 s3, s2, s3")
    e("v_lshrrev_b32 v1, 2, v0")
    e("v_and_b32 v2, 3, v0")
    e("s_movk_i32 s12, 5376")
    e("v_mul_lo_u32 v3, v1, s12")
    e("v_lshl_add_u32 v3, v2, 4, v3")
    e("s_lshl_b32 s13, s3, 6")
    e("v_lshlrev_b32 v4, 1, v1")
    e("s_waitcnt lgkmcnt(0)")
    srd(e, 16, 10, 11, 448 * 5376)
    srd(e, 20, 8, 9, 896)
    srd(e, 24, 6, 7, 0x10000)
    for i in range(7):
        if i: e(f"s_add_u32 s13, s13, {64*5376}")
        e.vmem(f"buffer_load_dwordx4 {v(16+4*i,4)}, v3, s[16:19], s13 offen", ('w', i))
    for i in range(7):
        e.vmem(f"buffer_load_short_d16_hi v{8+i}, v4, s[20:23], 0 offen offset:{128*i}", ('c', i))
    e("s_mul_i32 s14, s3, 4682")
    e("s_lshr_b32 s14, s14, 16")
    e("s_mul_i32 s15, s14, 14")
    e("s_sub_u32 s15, s3, s15")
    e.wait(vm=[('c', 6)])
    for i in range(7): e(f"v_and_b32 v{8+i}, 0xffff0000, v{8+i}")
    for i in range(7): e(f"v_mul_f32 v{48+i}, {hex(f2u(-math.log2(math.e)))}, v{8+i}")
    for i in range(7): e(f"v_exp_f32 v{48+i}, v{48+i}")
    for i in range(7): e(f"v_add_f32 v{48+i}, 1.0, v{48+i}")
    for i in range(7): e(f"v_rcp_f32 v{48+i}, v{48+i}")
    for i in range(7): e(f"v_mul_f32 v{8+i}, v{8+i}, v{48+i}")
    for i in range(7): bfround(e, f"v{8+i}", f"v{8+i}")
    for i in range(7):
        for p in range(4):
            w = 16 + 4*i + p
            e(f"v_lshlrev_b32 v56, 16, v{w}")
            e(f"v_and_b32 v57, 0xffff0000, v{w}")
            if i == 0:
                e(f"v_mul_f32 v{48+2*p}, v56, v8")
                e(f"v_mul_f32 v{49+2*p}, v57, v8")
            else:
                e(f"v_fmac_f32 v{48+2*p}, v56, v{8+i}")
                e(f"v_fmac_f32 v{49+2*p}, v57, v{8+i}")
    e("v_lshlrev_b32 v5, 5, v0")
    e("ds_write_b128 v5, v[48:51]")
    e("ds_write_b128 v5, v[52:55] offset:16")
    e("s_waitcnt lgkmcnt(0)")
    e("s_barrier")
    e("v_cmp_gt_u32 vcc, 64, v0")
    e("s_and_saveexec_b64 s[28:29], vcc")
    e("s_cbranch_execz K0_END")
    e("v_and_b32 v1, 31, v0")
    e("v_lshrrev_b32 v2, 5, v0")
    e("v_lshlrev_b32 v5, 2, v1")
    e("v_lshl_add_u32 v5, v2, 12, v5")
    e("v_add_u32 v6, 128, v5")
    for i in range(8):
        e(f"ds_read2st64_b32 {v(16+4*i,2)}, v5 offset0:{2*i} offset1:{2*i+1}")
        e(f"ds_read2st64_b32 {v(18+4*i,2)}, v6 offset0:{2*i} offset1:{2*i+1}")
    e("s_cmp_eq_u32 s14, 1")
    e("s_cselect_b32 s20, 1.0, 0")
    e("s_cmp_eq_u32 s14, 4")
    e("s_cselect_b32 s20, 1.0, s20")
    e("s_cmp_lt_u32 s14, 2")
    e(f"s_cselect_b32 s21, {hex(f2u(C0))}, 1.0")
    e("s_cselect_b32 s22, 64, 32")
    e("s_mov_b32 s23, 32")
    for sec, base in ((1, 0), (2, WS_GA), (3, WS_SB), (4, WS_S2), (5, WS_GB)):
        e(f"s_cmp_eq_u32 s14, {sec}")
        e(f"s_cselect_b32 s23, {base}, s23")
    e("s_lshl_b32 s15, s15, 2")
    e("v_lshrrev_b32 v7, 3, v1")
    e("v_add_u32 v7, s15, v7")
    e("v_mul_lo_u32 v7, v7, s22")
    e("v_and_b32 v8, 7, v1")
    e("v_lshl_add_u32 v7, v8, 2, v7")
    e("s_waitcnt lgkmcnt(0)")
    n = 32; base = 16
    while n > 1:
        for i in range(n // 2): e(f"v_add_f32 v{base+i}, v{base+2*i}, v{base+2*i+1}")
        n //= 2
    e("v_mov_b32 v17, v16")
    e("s_nop 1")
    e("v_permlane32_swap_b32 v16, v17")
    e("v_add_f32 v16, v16, v17")
    bfround(e, "v16", "v16")
    e("v_add_f32 v16, s20, v16")
    bfround(e, "v16", "v16")
    e("v_mul_f32 v16, s21, v16")
    e("v_cmp_gt_u32 vcc, 32, v0")
    e("s_and_b64 exec, exec, vcc")
    e("buffer_store_dword v16, v7, s[24:27], s23 offen")
    e("s_endpgm")
    e("K0_XHAT:")
    e(f"s_sub_u32 s3, s2, {NMOD}")
    e("v_lshrrev_b32 v1, 3, v0")
    e("v_and_b32 v2, 7, v0")
    e("s_movk_i32 s12, 896")
    e("v_mul_lo_u32 v3, v1, s12")
    e("v_lshl_add_u32 v3, v2, 4, v3")
    e(f"s_mul_i32 s13, s3, {32*896}")
    e("v_lshlrev_b32 v4, 9, v2")
    e("v_lshl_add_u32 v4, v1, 4, v4")
    e("s_waitcnt lgkmcnt(0)")
    srd(e, 16, 4, 5, ACT_BYTES)
    srd_off(e, 24, 6, 7, WS_XHAT, ACT_BYTES)
    for i in range(7):
        e.vmem(f"buffer_load_dwordx4 {v(8+4*i,4)}, v3, s[16:19], s13 offen offset:{128*i}", ('x', i))
    X = 40
    for i in range(7):
        e.wait(vm=[('x', i)])
        for p in range(4):
            e(f"v_lshlrev_b32 v{X+8*i+2*p}, 16, v{8+4*i+p}")
            e(f"v_and_b32 v{X+8*i+2*p+1}, 0xffff0000, v{8+4*i+p}")
    ln_stats(e, X, 56, 'v5', 'v6', tmp=8)
    for i in range(7):
        for p in range(8): e(f"v_sub_f32 v{X+8*i+p}, v{X+8*i+p}, v5")
        for p in range(8): e(f"v_mul_f32 v{X+8*i+p}, v{X+8*i+p}, v6")
        for p in range(4): e(f"v_cvt_pk_f16_f32 v{8+4*i+p}, v{X+8*i+2*p}, v{X+8*i+2*p+1}")
        if i: e(f"s_add_u32 s13, s13, 4096")
        e(f"buffer_store_dwordx4 {v(8+4*i,4)}, v4, s[24:27], s13 offen")
    e("K0_END:")
    e("s_endpgm")
    return e

def red8(e, r, t):
    e("s_nop 1")
    e(f"v_add_f32_dpp {r}, {r}, {r} quad_perm:[1,0,3,2] row_mask:0xf bank_mask:0xf")
    e("s_nop 1")
    e(f"v_add_f32_dpp {r}, {r}, {r} quad_perm:[2,3,0,1] row_mask:0xf bank_mask:0xf")
    e("s_nop 1")
    e(f"v_add_f32_dpp {r}, {r}, {r} row_half_mirror row_mask:0xf bank_mask:0xf")

def ln_stats(e, X, n, mean, rinv, tmp):
    t = [f"v{tmp+i}" for i in range(4)]
    for i in range(4): e(f"v_add_f32 {t[i]}, v{X+i}, v{X+4+i}")
    for i in range(8, n): e(f"v_add_f32 {t[i%4]}, {t[i%4]}, v{X+i}")
    e(f"v_add_f32 {t[0]}, {t[0]}, {t[1]}"); e(f"v_add_f32 {t[2]}, {t[2]}, {t[3]}")
    e(f"v_add_f32 {mean}, {t[0]}, {t[2]}")
    red8(e, mean, None)
    e(f"v_mul_f32 {mean}, {hex(f2u(1/448))}, {mean}")
    for i in range(n):
        e(f"v_sub_f32 {rinv}, v{X+i}, {mean}")
        if i < 4: e(f"v_mul_f32 {t[i]}, {rinv}, {rinv}")
        else: e(f"v_fmac_f32 {t[i%4]}, {rinv}, {rinv}")
    e(f"v_add_f32 {t[0]}, {t[0]}, {t[1]}"); e(f"v_add_f32 {t[2]}, {t[2]}, {t[3]}")
    e(f"v_add_f32 {rinv}, {t[0]}, {t[2]}")
    red8(e, rinv, None)
    e(f"v_mul_f32 {rinv}, {hex(f2u(1/448))}, {rinv}")
    bfround(e, rinv, rinv)
    e(f"v_add_f32 {rinv}, {hex(f2u(1e-5))}, {rinv}")
    bfround(e, rinv, rinv)
    e(f"v_sqrt_f32 {rinv}, {rinv}")
    e("s_nop 0")
    bfround(e, rinv, rinv)
    e(f"v_rcp_f32 {rinv}, {rinv}")
    bfround(e, mean, mean)
NAME = 'k0_kernel'
DESC = (96, 32, 96)
LAUNCH = f"grid=({GRID},1,1) block=(256,1,1) lds=8192"
```

```python
from common import *
import re
GRID = 256
SLOT = 32768
S_K, S_V, S_WQ, S_WO, S_X, S_P = 8, 12, 16, 20, 24, 28
sW = 3
sWOFF = 32
sKOFF, sVOFF = 33, 34
sKSL = 35
sKD = 36
sKRS = 37
sCNT = 38
sTHR = 39
sT0, sT1, sT2, sT3 = 40, 41, 42, 43
sXOFF = 44
vWADDR = 4
vL, vTS, vT6, vT7 = 4, 5, 6, 7
vWDMA = 8
vKADDR = 8
vKDMA = 16
vVDMA = 24
vXOFF, vMODA = 28, 29
vMOD = 32
vACC = 64
vS = [32, 64]
vP = [96, 112]
vNEGM = 128
vT = 144
vVADDR = 152
vOADDR = 156
vSTO = 158
vX = 192
vQ = 192
aO = 0
aF = 128
NF = 16
MF = "v_mfma_f32_32x32x16_bf16"

class Cfg:
    D = 6
    WG = 2
    CAP = 3
    BARG = 27
    BARL = 3
    stamps = False
    trips = 16
    sm_b = 12
    dump_q = False
    dump_o = False
    thr = 2.0**30
    abl = ()

def frag(i): return a(aF + 4 * (i % NF), 4)
def fragh(i, u): return a(aF + 4 * (i % NF) + 2 * u, 2)

def dma(e, voff, srd_, soff, imm, tag):
    o = f" offset:{imm}" if imm else ""
    e.vmem(f"buffer_load_dwordx4 v{voff}, {s(srd_,4)}, s{soff} offen{o} lds", tag)

def stamp(e, cfg, idx):
    m = {0: 0, 2: 1, 3: 2, 4: 3, 5: 4, 6: 5}
    if idx in m: tl(e, m[idx])
    if cfg.stamps: e(f"s_memtime s[{60+2*idx}:{61+2*idx}]")

def softmax_groups(S, P):
    ops = [[f"v_exp_f32 v{vT + i % 8}, v{S + i}"] for i in range(32)] + [["s_nop 0"]]
    for j in range(32):
        g = ops[j + 1]
        if j == 1: g.append(f"v_add_f32 v{vTS}, v{vT}, v{vT+1}")
        elif j >= 2: g.append(f"v_add_f32 v{vTS}, v{vTS}, v{vT + j % 8}")
        if j % 2 == 1: g.append(f"v_cvt_pk_bf16_f32 v{P + j // 2}, v{vT + (j-1) % 8}, v{vT + j % 8}")
    return ops

def run(e, f):
    if callable(f): f()
    elif isinstance(f, (list, tuple)):
        for x in f: run(e, x)
    else: e(f)

def phase(e, cfg, mf, cur, npre, nxt, fill, bar=None, switch=None, pre=None):
    D, CAP, n = cfg.D, cfg.CAP, len(mf)
    cnt = [0] * n
    items = [(i, t) for i in range(npre, n) for t in cur[i]]
    gaps = []
    g = 0
    for (i, t) in items:
        g = max(g, i - D, 0)
        while cnt[g] >= CAP: g += 1
        cnt[g] += 1; gaps.append(g)
    last = n - 1
    if bar is not None:
        dl = cfg.BARG - cfg.BARL
        cnt = [0] * n
        for k in range(len(items) - 1, -1, -1):
            g = min(gaps[k], dl)
            while cnt[g] >= CAP: g -= 1
            assert g >= 0
            cnt[g] += 1; gaps[k] = g; dl = g
    reads = {}
    for (i, t), g in zip(items, gaps):
        assert g < i and g >= i - NF, (i, g)
        reads.setdefault(g, []).append((t, i))
    lastcur = max(gaps) if gaps else -1
    nreads = {}
    npre_n = 0
    if nxt is not None:
        g = cfg.BARG if bar is not None else lastcur + (1 if switch else 0)
        for i in range(D):
            gi = max(g, n + i - D)
            pl = []
            c2 = list(cnt)
            ok = True
            for t in nxt[i]:
                while gi < n and c2[gi] >= CAP: gi += 1
                if gi >= n: ok = False; break
                c2[gi] += 1; pl.append((gi, t))
            if not ok: break
            cnt = c2; g = gi
            for (gg, t) in pl:
                assert gg >= n + i - NF
                nreads.setdefault(gg, []).append((t, i))
            npre_n = i + 1
    for m in range(n):
        if pre and m in pre: run(e, pre[m])
        if m % cfg.WG == 0:
            e.wait(lg=[('F', k % NF) for k in range(m, min(n, m + cfg.WG))])
        e(mf[m])
        for (t, fi) in reads.get(m, []): e.ds(t, ('F', fi % NF))
        if switch and m == lastcur + 1: run(e, switch)
        if bar is not None and m == cfg.BARG:
            e.wait(vm=bar, lg_all=True)
            e("s_barrier")
        for (t, fi) in nreads.get(m, []): e.ds(t, ('F', fi % NF))
        run(e, fill.get(m, []))
    return npre_n

QK_ORDER = [(kb, t) for t in range(16) for kb in range(2)]
PV_ORDER = [(db, ks) for ks in range(4) for db in range(8)]
def k_reads():
    return [[f"ds_read_b128 {frag(i)}, v{vKADDR + (t & 7)} offset:{kb*16384 + (t >> 3)*256}"] for i, (kb, t) in enumerate(QK_ORDER)]
def v_reads(addr, base, ustep):
    return [[f"ds_read_b64_tr_b16 {fragh(i, u)}, v{addr + (db & 3)} offset:{base + ks*8192 + u*ustep + (db >> 2)*256}" for u in (0, 1)]
            for i, (db, ks) in enumerate(PV_ORDER)]
def qk_mfmas(S, c0):
    return [f"{MF} {v(S + 16*kb, 16)}, {frag(i)}, {v(vQ + 4*t, 4)}, {c0 if t == 0 else v(S + 16*kb, 16)}" for i, (kb, t) in enumerate(QK_ORDER)]
def pv_mfmas(P):
    return [f"{MF} {a(aO + 16*db, 16)}, {frag(i)}, {v(P + 4*ks, 4)}, {a(aO + 16*db, 16)}" for i, (db, ks) in enumerate(PV_ORDER)]

def dma_group(e, m0expr, voffs, srd_, soff, tag):
    ops = []
    for q in range(8):
        g = []
        if q % 4 == 0:
            g.append(m0expr(4096 * (q // 4))); g.append("s_nop 0")
        g.append(lambda q=q: dma(e, voffs[q], srd_, soff, 1024 * (q & 3), tag))
        ops.append(g)
    return ops
def k_dma(e, tag='K'):
    ops = dma_group(e, lambda o: f"s_add_u32 m0, s{sKSL}, {o}", [vKDMA + q for q in range(8)], S_K, sKOFF, tag)
    ops.append([f"s_add_u32 s{sKOFF}, s{sKOFF}, {SLOT}", f"s_and_b32 s{sKOFF}, s{sKOFF}, 0xfffff",
                f"s_add_u32 s{sKSL}, s{sKSL}, {SLOT}", f"s_cmp_ge_u32 s{sKSL}, {3*SLOT}", f"s_cselect_b32 s{sKSL}, s{sWOFF}, s{sKSL}"])
    return ops
def v_dma(e, slot, tag='V'):
    ops = dma_group(e, lambda o: f"s_add_u32 m0, s{sWOFF}, {slot*SLOT + o}", [vVDMA + 2*(q // 4) + (q & 1) for q in range(8)], S_V, sVOFF, tag)
    ops.append([f"s_add_u32 s{sVOFF}, s{sVOFF}, {SLOT}", f"s_and_b32 s{sVOFF}, s{sVOFF}, 0xfffff"])
    return ops
def w_dma(e, slot, tile):
    ops = dma_group(e, lambda o: f"s_add_u32 m0, s{sWOFF}, {slot*SLOT + o}", [vWDMA + q for q in range(8)], S_WQ, sT0, ('W', tile))
    ops[0] = [f"s_mov_b32 s{sT0}, {tile*64*8192}"] + ops[0]
    return ops
def wo_dma(e, slot, tile):
    ops = dma_group(e, lambda o: f"s_add_u32 m0, s{sWOFF}, {slot*SLOT + o}", [vKDMA + q for q in range(8)], S_WO, sT0, ('WO', tile))
    ops[0] = [f"s_mov_b32 s{sT0}, {tile*128}"] + ops[0]
    return ops

def spread(fill, ops, gaps):
    n = len(ops)
    for i, o in enumerate(ops):
        fill.setdefault(gaps[i * len(gaps) // n], []).append(o)

def rowmax(e, S, dst, tmp):
    e(f"v_max3_f32 {dst}, v{S}, v{S+1}, v{S+2}")
    e(f"v_max3_f32 {tmp}, v{S+3}, v{S+4}, v{S+5}")
    i = 6
    while i < 32:
        r = dst if (i // 2) % 2 else tmp
        e(f"v_max3_f32 {r}, {r}, v{S+i}, v{S+i+1}"); i += 2
    e(f"v_max_f32 {dst}, {dst}, {tmp}")
    e(f"v_mov_b32 {tmp}, {dst}")
    e("s_nop 1")
    e(f"v_permlane32_swap_b32 {dst}, {tmp}")
    e(f"v_max_f32 {dst}, {dst}, {tmp}")

def kaddr_adv():
    return [[f"s_add_u32 s{sKRS}, s{sKRS}, 1", f"s_cmp_eq_u32 s{sKRS}, 3", f"s_cselect_b32 s{sKD}, {-2*SLOT & 0xffffffff}, {SLOT}".replace(str(-2*SLOT & 0xffffffff), f"s{sT3}"),
             f"s_cselect_b32 s{sKRS}, 0, s{sKRS}"]] + [f"v_add_u32 v{vKADDR+x}, s{sKD}, v{vKADDR+x}" for x in range(8)]

def gen(cfg=Cfg):
    e = Em()
    e(f"s_cmp_ge_u32 s2, {GRID}")
    e("s_cbranch_scc1 K1_END")
    e(f"s_load_dwordx8 s[48:55], s[0:1], {ARG['k']}")
    e(f"s_load_dwordx2 s[56:57], s[0:1], {ARG['ws']}")
    stamp(e, cfg, 0)
    if cfg.stamps: e("s_memrealtime s[84:85]")
    e("v_lshrrev_b32 v1, 6, v0")
    e("v_and_b32 v2, 63, v0")
    e(f"v_readfirstlane_b32 s{sW}, v1")
    e("s_and_b32 s4, s2, 7")
    e("s_bfe_u32 s5, s2, 0x10003")
    e("s_lshl_b32 s6, s4, 1")
    e("s_add_u32 s5, s5, s6")
    e("s_lshr_b32 s6, s2, 4")
    e("s_lshr_b32 s7, s2, 3")
    e(f"s_lshl_b32 s{sWOFF}, s{sW}, 13")
    e(f"s_lshl_b32 s{sKOFF}, s7, 15")
    e(f"s_mov_b32 s{sVOFF}, s{sKOFF}")
    e(f"s_mov_b32 s{sKSL}, s{sWOFF}")
    e(f"s_mov_b32 s{sTHR}, {hex(f2u(cfg.thr))}")
    e(f"s_mov_b32 s{sKRS}, 0")
    e(f"s_mov_b32 s{sT3}, {hex(-2*SLOT & 0xffffffff)}")
    e("v_lshrrev_b32 v3, 5, v2")
    e("v_and_b32 v30, 31, v2")
    e(f"s_lshl_b32 s{sT0}, s{sW}, 4")
    e(f"v_add_u32 v31, s{sT0}, v3")
    e("v_lshlrev_b32 v1, 2, v3")
    e("v_xor_b32 v1, v30, v1")
    e("v_xor_b32 v29, 8, v1")
    e("v_lshlrev_b32 v1, 4, v1")
    e("v_lshlrev_b32 v29, 4, v29")
    for q in range(8):
        e(f"v_lshl_add_u32 v{vWDMA+q}, v31, 13, {'v29' if q & 1 else 'v1'}")
        c = 2*q*8192 - 1024*(q & 3)
        if c: e(f"v_add_u32 v{vWDMA+q}, {c}, v{vWDMA+q}")
    e(f"v_lshlrev_b32 v{vXOFF}, 4, v2")
    e(f"s_lshl2_add_u32 s{sXOFF}, s6, s{sW}")
    e(f"s_mul_i32 s{sXOFF}, s{sXOFF}, 28672")
    e(f"s_add_u32 s{sXOFF}, s{sXOFF}, {WS_XHAT}")
    e(f"s_lshl_b32 s{sT0}, s5, 9")
    e("s_waitcnt lgkmcnt(0)")
    srd_off(e, S_WQ, 52, 53, f"s{sT0}", 447*8192 + 512)
    srd(e, S_X, 56, 57, WS_XHAT + ACT_BYTES)
    wsl = [4, 3, 1, 4, 3, 1, 4]
    run(e, w_dma(e, wsl[0], 0))
    e(f"s_lshl_b32 s{sT1}, s{sW}, 10")
    e(f"s_add_u32 m0, s{sT1}, {2*SLOT}")
    e("s_nop 0")
    e.vmem(f"buffer_load_dwordx4 v{vXOFF}, {s(S_X,4)}, s{sT1} offen lds", 'M')
    def xload(t):
        if t % 4 == 0 and t: e(f"s_add_u32 s{sXOFF}, s{sXOFF}, 4096")
        e.vmem(f"buffer_load_dwordx4 {v(vX + 4*(t % 16), 4)}, v{vXOFF}, {s(S_X,4)}, s{sXOFF} offen offset:{1024*(t % 4)}", ('X', t))
    for t in range(4): xload(t)
    run(e, w_dma(e, wsl[1], 1))
    for t in range(4, 8): xload(t)
    run(e, w_dma(e, wsl[2], 2))
    for t in range(8, 16): xload(t)
    for h in range(2):
        for o in range(2):
            e(f"v_lshl_add_u32 v{vVDMA+2*h+o}, v31, 9, {'v29' if o else 'v1'}")
            if h: e(f"v_add_u32 v{vVDMA+2*h+o}, 4096, v{vVDMA+2*h+o}")
    e(f"s_lshl_b32 s{sT0}, s4, 20")
    srd_off(e, S_K, 48, 49, f"s{sT0}", 1 << 20)
    srd_off(e, S_V, 50, 51, f"s{sT0}", 1 << 20)
    e("v_xor_b32 v1, v30, v3")
    for q in range(8):
        e(f"v_xor_b32 v29, {2*q}, v1")
        e(f"v_lshlrev_b32 v29, 4, v29")
        e(f"v_lshl_add_u32 v{vKDMA+q}, v31, 9, v29")
        if q >= 4: e(f"v_add_u32 v{vKDMA+q}, 4096, v{vKDMA+q}")
    run(e, k_dma(e, 'K0'))
    e(f"s_mul_i32 s{sT0}, s5, {256*896}")
    srd_off(e, S_WO, 54, 55, f"s{sT0}", 256*896)
    e(f"s_lshl2_add_u32 s{sT0}, s6, s{sW}")
    e(f"s_lshl_b32 s{sT0}, s{sT0}, 6")
    e(f"s_add_u32 s{sT0}, s{sT0}, s5")
    e(f"s_mul_i32 s{sT0}, s{sT0}, 7168")
    e(f"s_add_u32 s{sT0}, s{sT0}, {WS_PART}")
    srd_off(e, S_P, 56, 57, f"s{sT0}", 3*16*7168 + 7168)
    def pchunk(dst, tmp):
        return [f"v_bfe_u32 {dst}, v2, 4, 1", f"v_lshlrev_b32 {dst}, 5, {dst}", f"v_and_b32 {tmp}, 1, v2",
                f"v_lshl_add_u32 {dst}, {tmp}, 4, {dst}", f"v_bfe_u32 {tmp}, v2, 1, 1", f"v_lshl_add_u32 {dst}, {tmp}, 3, {dst}"]
    e("v_bfe_u32 v1, v2, 2, 2")
    run(e, pchunk('v29', 'v31'))
    e("v_lshl_add_u32 v31, v3, 3, v1")
    e("v_lshl_add_u32 v31, v31, 9, v29")
    e(f"v_add_u32 v31, {wsl[0]*SLOT}, v31")
    for x in range(4):
        e(f"v_xor_b32 v{vWADDR+x}, {x}, v1")
        e(f"v_lshl_add_u32 v{vWADDR+x}, v{vWADDR+x}, 6, v31")
    e(f"v_lshlrev_b32 v{vMODA}, 6, v3")
    e(f"v_add_u32 v{vMODA}, {2*SLOT}, v{vMODA}")
    def mod_reads(t):
        b = vMOD + 16 * (t % 2)
        return [(lambda q=q: e.ds(f"ds_read_b128 {v(b + 4*q, 4)}, v{vMODA} offset:{t*128 + 16*q}", ('M', t))) for q in range(4)]
    def h_ops(t):
        b = vMOD + 16 * (t % 2); x = vX + 4 * (t % 16)
        ops = [lambda: e.wait(lg=[('M', t)], vm=[('X', t)])]
        for j in range(8):
            sel = " op_sel:[1,0,0]" if j & 1 else ""
            ops.append(f"v_fma_mix_f32 v{b+8+j}, v{x + j//2}, v{b+j}, v{b+8+j}{sel} op_sel_hi:[1,0,0]")
        for p in range(4): ops.append(f"v_cvt_pk_bf16_f32 v{x+p}, v{b+8+2*p}, v{b+9+2*p}")
        return ops
    stamp(e, cfg, 1)
    e.wait(vm=[('W', 0), 'M'])
    e("s_barrier")
    wr = v_reads(vWADDR, 0, 2048)
    npre = cfg.D
    run(e, mod_reads(0)); run(e, mod_reads(1))
    for i in range(npre):
        for t in wr[i]: e.ds(t, ('F', i))
    run(e, h_ops(0))
    e("s_nop 0")
    stamp(e, cfg, 2)
    for tile in range(7):
        mf = []
        for i, (db, ks) in enumerate(PV_ORDER):
            t = 4*tile + ks
            acc = v(vACC + 16*db, 16)
            mf.append(f"{MF} {acc}, {frag(i)}, {v(vX + 4*(t % 16), 4)}, {0 if t == 0 else acc}")
        fill = {}
        for ks in range(4):
            t = 4*tile + ks; g0 = 8*ks
            if t + 2 < 28: spread(fill, mod_reads(t + 2), [g0, g0+1, g0+2, g0+3])
            if t + 1 < 28: spread(fill, h_ops(t + 1), list(range(g0 + 1, g0 + 7)))
            if 1 <= t <= 12: fill.setdefault(g0 + 7, []).append(lambda t=t: xload(t + 15))
        dg = list(range(1, 25, 3)) + [25]
        if 1 <= tile <= 4: spread(fill, w_dma(e, wsl[tile+2], tile + 2), dg[:8])
        elif tile == 5: spread(fill, v_dma(e, 3, 'V'), dg)
        elif tile == 6: spread(fill, k_dma(e, 'K1'), dg)
        if tile == 5:
            ops = ["v_and_b32 v1, 15, v2", "v_xor_b32 v1, v1, v3", "v_lshlrev_b32 v31, 9, v30"]
            for x in range(8):
                ops.append([f"v_xor_b32 v{vKADDR+x}, {2*x}, v1", f"v_lshl_add_u32 v{vKADDR+x}, v{vKADDR+x}, 4, v31"])
            spread(fill, ops, list(range(8, 30, 2)))
        if tile < 6:
            d = (wsl[tile+1] - wsl[tile]) * SLOT
            sw = [f"v_add_u32 v{vWADDR+x}, {hex(d & 0xffffffff)}, v{vWADDR+x}" for x in range(4)]
            npre = phase(e, cfg, mf, wr, npre, wr, fill, bar=[('W', tile + 1)], switch=sw)
        else:
            npre = phase(e, cfg, mf, wr, npre, k_reads(), fill, bar=['K0'])
    stamp(e, cfg, 3)
    e.nop(6)
    for i in range(64): e(f"v_cvt_pk_bf16_f32 v{vQ+i}, v{vACC+2*i}, v{vACC+2*i+1}")
    if cfg.dump_q:
        e(f"s_lshl2_add_u32 s{sT0}, s2, s{sW}"); e(f"s_lshl_b32 s{sT0}, s{sT0}, 14"); e(f"s_add_u32 s{sT0}, s{sT0}, {WS_DBG}")
        srd_off(e, 80, 56, 57, f"s{sT0}", 16384)
        for t in range(16):
            e(f"s_mov_b32 s{sT0}, {t*1024}")
            e.vmem(f"buffer_store_dwordx4 {v(vQ+4*t,4)}, v{vXOFF}, s[80:83], s{sT0} offen", 'K1')
    e("v_bfe_u32 v1, v2, 2, 2")
    e("v_bfe_u32 v29, v2, 4, 1"); e("v_lshlrev_b32 v29, 5, v29"); e("v_and_b32 v31, 3, v2"); e("v_lshl_add_u32 v29, v31, 3, v29")
    e("v_lshl_add_u32 v31, v3, 2, v1"); e("v_lshl_add_u32 v31, v31, 9, v29"); e(f"v_add_u32 v31, {3*SLOT}, v31")
    for x in range(4):
        e(f"v_xor_b32 v{vVADDR+x}, {x}, v1")
        e(f"v_lshl_add_u32 v{vVADDR+x}, v{vVADDR+x}, 6, v31")
    fill = {}
    spread(fill, k_dma(e, 'K'), dg)
    spread(fill, [f"v_accvgpr_write_b32 a{aO+i}, 0" for i in range(128)], list(range(0, 32)))
    npre = phase(e, cfg, qk_mfmas(vS[0], 0), k_reads(), npre, k_reads(), fill, bar=['K1', 'V'], switch=kaddr_adv())
    e.nop(10)
    rowmax(e, vS[0], f"v{vT6}", f"v{vT7}")
    for i in range(16): e(f"v_sub_f32 v{vNEGM+i}, 0, v{vT6}")
    for i in range(32): e(f"v_sub_f32 v{vS[0]+i}, v{vS[0]+i}, v{vT6}")
    e(f"v_mov_b32 v{vL}, 0")
    run(e, softmax_groups(vS[0], vP[0])[:cfg.sm_b])
    e(f"s_mov_b32 s{sCNT}, {cfg.trips}")
    stamp(e, cfg, 4)
    if cfg.stamps: e("s_memrealtime s[86:87]")
    e(".p2align 6") if False else None
    e("K1_LOOP:")
    st0 = (list(e.lg), list(e.vm), npre)
    loop_start = len(e.lines)
    for p in range(2):
        fill = {}
        spread(fill, softmax_groups(vS[p], vP[p])[cfg.sm_b:], list(range(0, 30)))
        spread(fill, v_dma(e, 3 + (p ^ 1)), dg)
        fill.setdefault(30, []).append(f"v_cmp_lt_f32 vcc, s{sTHR}, v{vTS}")
        fill.setdefault(31, []).extend([f"s_cbranch_vccnz K1_SLOW{p}", f"K1_BACK{p}:", f"v_add_f32 v{vL}, v{vL}, v{vTS}"])
        vr = v_reads(vVADDR, p * SLOT, 4096)
        npre = phase(e, cfg, qk_mfmas(vS[p ^ 1], v(vNEGM, 16)), k_reads(), npre, vr, fill)
        fill = {}
        spread(fill, softmax_groups(vS[p ^ 1], vP[p ^ 1])[:cfg.sm_b], list(range(3, 31)))
        e.vm = [('Kold' if t == 'K' else t) for t in e.vm]
        spread(fill, k_dma(e), dg)
        spread(fill, kaddr_adv(), list(range(2, 20, 2)))
        if p == 1: fill.setdefault(30, []).extend([f"s_sub_u32 s{sCNT}, s{sCNT}, 1", f"s_cmp_lg_u32 s{sCNT}, 0"])
        npre = phase(e, cfg, pv_mfmas(vP[p]), vr, npre, k_reads(), fill, bar=['Kold', 'V'])
    e("s_cbranch_scc1 K1_LOOP")
    loop_end = len(e.lines)
    assert st0 == (list(e.lg), list(e.vm), npre), (st0, e.lg, e.vm, npre)
    if cfg.abl:
        body = e.lines[loop_start:loop_end]
        nb = []
        cnt = 0
        for l in body:
            x = l.strip()
            if 'nosm' in cfg.abl and x.startswith(('v_exp', 'v_add_f32', 'v_cvt_pk', 's_cbranch_vccnz')): continue
            if 'nodma' in cfg.abl and 'lds' in x and x.startswith('buffer_load'): continue
            if x.startswith('ds_read'):
                r = int(re.search(r'a\[(\d+):', x).group(1))
                if 'nolds' in cfg.abl: continue
                if 'halflds' in cfg.abl and ((r - aF) // 4) % 2 == 1: continue
            if x.startswith('s_waitcnt') and 'halflds' in cfg.abl and 'vmcnt' not in x:
                n = int(re.search(r'lgkmcnt\((\d+)\)', x).group(1)); l = f"  s_waitcnt lgkmcnt({n//2})"
            if 'm16' in cfg.abl and x.startswith('v_mfma'):
                m = re.match(r'v_mfma\S+ ([va])\[(\d+):\d+\], (\S+), (\S+), ([va])\[(\d+):\d+\]', x)
                k = cnt % 2; cnt += 1
                for h in range(2):
                    d = int(m.group(2)) + 8*k + 4*h; c = int(m.group(6)) + 8*k + 4*h
                    nb.append(f"  v_mfma_f32_16x16x32_bf16 {m.group(1)}[{d}:{d+3}], {m.group(3)}, {m.group(4)}, {m.group(5)}[{c}:{c+3}]")
                continue
            nb.append(l)
        e.lines[loop_start:loop_end] = nb
        loop_end = len(e.lines)
    stamp(e, cfg, 5)
    if cfg.stamps: e("s_memrealtime s[88:89]")
    e.wait(lg_all=True, vm_all=True)
    e("s_barrier")
    e("v_lshrrev_b32 v1, 3, v2"); e(f"s_lshl_b32 s{sT0}, s{sW}, 6"); e(f"v_add_u32 v1, s{sT0}, v1")
    e(f"s_movk_i32 s{sT1}, 896"); e(f"v_mul_lo_u32 v1, v1, s{sT1}")
    e("v_bfe_u32 v29, v2, 4, 1"); e("v_lshlrev_b32 v29, 2, v29"); e("v_and_b32 v31, 7, v2"); e("v_xor_b32 v29, v29, v31")
    e("v_lshl_add_u32 v1, v29, 4, v1")
    for q in range(8): e(f"v_add_u32 v{vKDMA+q}, {7168*q - 1024*(q & 3)}, v1")
    for t in range(5): run(e, wo_dma(e, t, t))
    run(e, pchunk('v29', 'v31'))
    e("v_bfe_u32 v1, v2, 2, 2"); e("v_lshl_add_u32 v31, v3, 2, v1"); e("v_lshl_add_u32 v31, v31, 7, v29")
    e("v_lshrrev_b32 v1, 1, v1")
    e(f"v_lshl_add_u32 v{vOADDR}, v1, 6, v31"); e("v_xor_b32 v1, 1, v1"); e(f"v_lshl_add_u32 v{vOADDR+1}, v1, 6, v31")
    e("v_lshrrev_b32 v1, 3, v30"); e(f"s_mov_b32 s{sT1}, 114688"); e(f"v_mul_lo_u32 v1, v1, s{sT1}")
    e("v_lshl_add_u32 v1, v3, 7, v1"); e("v_and_b32 v31, 7, v2"); e(f"v_lshl_add_u32 v{vSTO}, v31, 4, v1")
    e(f"v_mov_b32 v{vT6}, v{vL}"); e("s_nop 1"); e(f"v_permlane32_swap_b32 v{vL}, v{vT6}"); e(f"v_add_f32 v{vL}, v{vL}, v{vT6}")
    e(f"v_rcp_f32 v{vL}, v{vL}")
    for i in range(0, 128, 8):
        for j in range(8): e(f"v_accvgpr_read_b32 v{vT+j}, a{aO+i+j}")
        for j in range(8): e(f"v_mul_f32 v{vT+j}, v{vT+j}, v{vL}")
        for j in range(4): e(f"v_cvt_pk_bf16_f32 v{vQ+i//2+j}, v{vT+2*j}, v{vT+2*j+1}")
    if cfg.dump_o:
        e(f"s_lshl2_add_u32 s{sT0}, s2, s{sW}"); e(f"s_lshl_b32 s{sT0}, s{sT0}, 14"); e(f"s_add_u32 s{sT0}, s{sT0}, {WS_DBG + 0x1000000}")
        srd_off(e, 80, 56, 57, f"s{sT0}", 16384)
        for t in range(16):
            e(f"s_mov_b32 s{sT0}, {t*1024}")
            e.vmem(f"buffer_store_dwordx4 {v(vQ+4*t,4)}, v{vXOFF}, s[80:83], s{sT0} offen", 'D')
    stamp(e, cfg, 6)
    O_ORDER = [(nb, ks) for ks in range(16) for nb in range(2)]
    orr = [[f"ds_read_b64_tr_b16 {fragh(i, u)}, v{vOADDR + nb} offset:{ks*2048 + u*1024}" for u in (0, 1)] for i, (nb, ks) in enumerate(O_ORDER)]
    e.wait(vm=[('WO', 0)])
    e("s_barrier")
    npre = cfg.D
    for i in range(npre):
        for t in orr[i]: e.ds(t, ('F', i))
    vOA = [32, 64]; vOUT = 96
    def out_ops(tile):
        A = vOA[tile % 2]; ops = [f"s_mov_b32 s{sT1}, {tile*1024}"]
        for nb in range(2):
            for u in range(2):
                o = vOUT + 8*nb + 4*u
                for p in range(4): ops.append(f"v_cvt_pk_bf16_f32 v{o+p}, v{A+16*nb+8*u+2*p}, v{A+16*nb+8*u+2*p+1}")
                ops.append(lambda o=o, nb=nb, u=u: e.vmem(f"buffer_store_dwordx4 {v(o,4)}, v{vSTO}, {s(S_P,4)}, s{sT1} offen offset:{(4*nb+2*u)*128}", 'ST'))
        return ops
    for tile in range(7):
        A = vOA[tile % 2]
        mf = [f"{MF} {v(A+16*nb,16)}, {frag(i)}, {v(vQ+4*ks,4)}, {0 if ks == 0 else v(A+16*nb,16)}" for i, (nb, ks) in enumerate(O_ORDER)]
        fill = {}
        if tile in (1, 2): spread(fill, wo_dma(e, tile - 1, tile + 4), dg[:8])
        if tile >= 1: spread(fill, out_ops(tile - 1), list(range(4, 26)))
        if tile < 6:
            d = (((tile + 1) % 5) - (tile % 5)) * SLOT
            sw = [f"v_add_u32 v{vOADDR+x}, {hex(d & 0xffffffff)}, v{vOADDR+x}" for x in range(2)]
            npre = phase(e, cfg, mf, orr, npre, orr, fill, bar=[('WO', tile + 1)], switch=sw)
        else:
            phase(e, cfg, mf, orr, npre, None, fill)
    e.nop(12)
    run(e, out_ops(6))
    stamp(e, cfg, 7)
    if cfg.stamps:
        e("s_waitcnt vmcnt(0)")
        e("s_memtime s[76:77]")
        e("s_memrealtime s[78:79]")
        e("s_waitcnt lgkmcnt(0)")
        e(f"s_lshl2_add_u32 s{sT0}, s2, s{sW}"); e(f"s_lshl_b32 s{sT0}, s{sT0}, 7"); e(f"s_add_u32 s{sT0}, s{sT0}, {WS_DBG + 0x2000000}")
        srd_off(e, 80, 56, 57, f"s{sT0}", 128)
        e("v_mov_b32 v1, 0")
        for i, r in enumerate(list(range(60, 80)) + list(range(84, 90))):
            e(f"v_mov_b32 v2, s{r}")
            e(f"buffer_store_dword v2, v1, s[80:83], 0 offen offset:{4*i}")
    tl_end(e, 1, 56, 57, 6)
    e("K1_END:")
    e("s_endpgm")
    main_lines = list(e.lines)
    for p in range(2):
        Sc, Sn = vS[p], vS[p ^ 1]
        e(f"K1_SLOW{p}:")
        e.nop(16)
        rowmax(e, Sc, f"v{vT6}", f"v{vT7}")
        e(f"v_max_f32 v{vT6}, 0, v{vT6}")
        e(f"v_sub_f32 v{vT7}, 0, v{vT6}")
        e(f"v_exp_f32 v{vT7}, v{vT7}")
        for i in range(16): e(f"v_sub_f32 v{vNEGM+i}, v{vNEGM+i}, v{vT6}")
        for i in range(32): e(f"v_sub_f32 v{Sc+i}, v{Sc+i}, v{vT6}")
        for i in range(32): e(f"v_sub_f32 v{Sn+i}, v{Sn+i}, v{vT6}")
        e(f"v_mul_f32 v{vL}, v{vL}, v{vT7}")
        for i in range(0, 128, 8):
            for j in range(8): e(f"v_accvgpr_read_b32 v{vT+j}, a{aO+i+j}")
            for j in range(8): e(f"v_mul_f32 v{vT+j}, v{vT+j}, v{vT7}")
            for j in range(8): e(f"v_accvgpr_write_b32 a{aO+i+j}, v{vT+j}")
        run(e, softmax_groups(Sc, vP[p]))
        e.nop(2)
        e(f"s_branch K1_BACK{p}")
    chk = main_lines[:loop_end] + main_lines[loop_start:]
    errs = check_hazards(chk, 'k1') + check_hazards(e.lines[len(main_lines):], 'k1slow')
    for x in errs[:3]: print('HAZARD', x)
    assert cfg.abl or not errs
    return e
NAME = 'k1_kernel'
DESC = (512, 96, 256)
LAUNCH = f"grid=({GRID},1,1) block=(256,1,1) lds=163840"
```

```python
from common import *
import k1
from k1 import run, spread, dma, MF
GRID = 256
UNIT = 14464
NF = 14
aF = 0
S_G, S_D, S_H, S_P = 8, 12, 16, 20
sW, sGOFF, sLB, sT0, sT1, sDL, sDG = 3, 24, 25, 26, 27, 28, 29
vGD = 8
vDD = 16
vGA = 24
vDA = 25
vSTO = 29
vH = 32
vACC = 144
vHH = 32
vOA = [64, 96]
vOUT = 128
class Cfg(k1.Cfg):
    D = 6; WG = 2; CAP = 3; BARG = 23; BARL = 3

def fragh(i, u): return a(aF + 4 * (i % NF) + 2 * u, 2)
def frag(i): return a(aF + 4 * (i % NF), 4)

def gu_dma(e, tile, unit):
    ops = []
    for q in range(7):
        g = []
        if q == 0: g.append(f"s_add_u32 s{sT0}, s{sGOFF}, {tile*64*3584}")
        if q % 4 == 0: g += [f"s_add_u32 m0, s{sLB}, {unit*UNIT + 4096*(q//4)}", "s_nop 0"]
        g.append(lambda q=q: dma(e, vGD + q, S_G, sT0, 1024*(q & 3), ('G', tile)))
        ops.append(g)
    return ops
def d_dma(e, ks0, unit0, n):
    ops = []
    for q in range(7):
        g = []
        if q == 0: g.append(f"s_add_u32 s{sT1}, s{sDG if n == 2 else sDG+1}, {ks0*14336}")
        if q % 4 == 0: g += [f"s_add_u32 m0, s{sDL if n == 2 else sDG+1}, {unit0*UNIT + 4096*(q//4)}", "s_nop 0"]
        g.append(lambda q=q: dma(e, vDD + q, S_D, sT1, 1024*(q & 3), 'D'))
        ops.append(g)
    return ops

def gen(cfg=Cfg):
    k1.NF = NF
    e = Em()
    e(f"s_cmp_ge_u32 s2, {GRID}")
    e("s_cbranch_scc1 K2_END")
    e(f"s_load_dwordx4 s[48:51], s[0:1], {ARG['wg']}")
    e(f"s_load_dwordx2 s[52:53], s[0:1], {ARG['wd']}")
    e(f"s_load_dwordx2 s[56:57], s[0:1], {ARG['ws']}")
    e("v_lshrrev_b32 v1, 6, v0")
    e("v_and_b32 v2, 63, v0")
    e(f"v_readfirstlane_b32 s{sW}, v1")
    e("s_and_b32 s4, s2, 7")
    e("s_bfe_u32 s5, s2, 0x10003")
    e("s_lshl_b32 s6, s4, 1")
    e("s_add_u32 s5, s5, s6")
    e("s_lshr_b32 s6, s2, 4")
    e("v_lshrrev_b32 v3, 5, v2")
    e("v_and_b32 v30, 31, v2")
    e("s_movk_i32 s7, 4682")
    e(f"s_movk_i32 s{sT0}, {3584 - 14*16}")
    for q in range(7):
        e(f"v_add_u32 v4, {64*q}, v2")
        e("v_mul_lo_u32 v5, v4, s7")
        e("v_lshrrev_b32 v5, 16, v5")
        e(f"v_mul_lo_u32 v5, v5, s{sT0}")
        e(f"v_lshl_add_u32 v{vGD+q}, v4, 4, v5")
        if q & 3: e(f"v_subrev_u32 v{vGD+q}, {1024*(q&3)}, v{vGD+q}")
    e(f"s_and_b32 s{sT0}, s{sW}, 1")
    e(f"s_mul_i32 s{sGOFF}, s{sT0}, {32*3584}")
    e(f"s_mul_i32 s{sLB}, s{sT0}, 7168")
    e(f"s_mov_b32 s{sDG+1}, s{sLB}")
    e(f"s_lshr_b32 s{sT1}, s{sW}, 1")
    e(f"s_mul_i32 s7, s{sT1}, {UNIT}")
    e(f"s_add_u32 s{sLB}, s{sLB}, s7")
    e(f"s_mov_b32 s{sDL}, s{sLB}")
    e(f"s_mul_i32 s{sDG}, s{sW}, 7168")
    e(f"s_mul_i32 s7, s5, 224")
    e("v_lshlrev_b32 v6, 4, v2")
    e(f"s_lshl2_add_u32 s40, s6, s{sW}")
    e(f"s_mul_i32 s31, s40, 28672")
    e(f"s_add_u32 s31, s31, {WS_H2}")
    e(f"s_cmp_eq_u32 s{sT1}, 0")
    e("s_waitcnt lgkmcnt(0)")
    e("s_cselect_b32 s48, s48, s50")
    e("s_cselect_b32 s49, s49, s51")
    srd_off(e, S_G, 48, 49, "s7", 447*3584 + 224)
    srd_off(e, S_H, 56, 57, "s31", 28672)
    def hload(t):
        e.vmem(f"buffer_load_dwordx4 {v(vH+4*t,4)}, v6, {s(S_H,4)}, s{32 + t//4} offen offset:{1024*(t%4)}", ('H', t))
    for i in range(7): e(f"s_movk_i32 s{32+i}, {4096*i}")
    run(e, gu_dma(e, 0, 0))
    for t in range(4): hload(t)
    run(e, gu_dma(e, 1, 2))
    for t in range(4, 8): hload(t)
    run(e, gu_dma(e, 2, 4))
    for t in range(8, 12): hload(t)
    e("s_movk_i32 s7, 1171")
    for q in range(7):
        e(f"v_add_u32 v4, {64*q}, v2")
        e("v_mul_lo_u32 v5, v4, s7")
        e("v_bfe_u32 v5, v5, 17, 1")
        e("v_lshlrev_b32 v5, 6, v5")
        e("v_lshlrev_b32 v4, 4, v4")
        e(f"v_xor_b32 v{vDD+q}, v4, v5")
        if q & 3: e(f"v_subrev_u32 v{vDD+q}, {1024*(q&3)}, v{vDD+q}")
    e(f"s_mul_i32 s7, s5, {112*896}")
    srd_off(e, S_D, 52, 53, "s7", 112*896)
    e(f"s_lshl_b32 s7, s40, 6")
    e(f"s_add_u32 s7, s7, s5")
    e(f"s_mul_i32 s7, s7, 7168")
    e(f"s_add_u32 s7, s7, {WS_PART2}")
    srd_off(e, S_P, 56, 57, "s7", 3*16*7168 + 7168)
    e("v_bfe_u32 v1, v2, 2, 2")
    e("v_and_b32 v4, 1, v2"); e("v_lshlrev_b32 v4, 4, v4"); e("v_bfe_u32 v5, v2, 1, 1"); e("v_lshl_add_u32 v4, v5, 3, v4")
    e("v_lshl_add_u32 v5, v3, 3, v1"); e("v_mul_u32_u24 v7, 224, v5"); e("v_add_u32 v7, v7, v4")
    e("v_bfe_u32 v31, v2, 4, 1")
    e(f"v_mul_u32_u24 v{vGA}, {UNIT}, v31"); e(f"v_add_u32 v{vGA}, v{vGA}, v7")
    e("v_mul_u32_u24 v7, 896, v5"); e("v_add_u32 v7, v7, v4"); e("v_lshl_add_u32 v7, v31, 5, v7")
    e("v_lshrrev_b32 v1, 1, v1")
    e(f"v_lshl_add_u32 v{vDA}, v1, 6, v7"); e("v_xor_b32 v1, 1, v1"); e(f"v_lshl_add_u32 v{vDA+1}, v1, 6, v7")
    e(f"v_add_u32 v{vDA+2}, {8*UNIT}, v{vDA}"); e(f"v_add_u32 v{vDA+3}, {8*UNIT}, v{vDA+1}")
    e(f"v_add_u32 v{vDA}, {4*UNIT}, v{vDA}"); e(f"v_add_u32 v{vDA+1}, {4*UNIT}, v{vDA+1}")
    e("v_lshrrev_b32 v1, 3, v30"); e(f"s_mov_b32 s7, 114688"); e(f"v_mul_lo_u32 v1, v1, s7")
    e("v_lshl_add_u32 v1, v3, 7, v1"); e("v_and_b32 v31, 7, v2"); e(f"v_lshl_add_u32 v{vSTO}, v31, 4, v1")
    ORD = [(b, ks) for ks in range(4) for b in range(7)]
    gr = [[f"ds_read_b64_tr_b16 {fragh(i, u)}, v{vGA} offset:{ks*16*224 + u*4*224 + b*32}" for u in (0, 1)] for i, (b, ks) in enumerate(ORD)]
    dunit = [10, 4, 5, 6, 7, 8, 9]
    DORD = [(nb, ks) for ks in range(7) for nb in range(2)]
    def dreads(tile):
        out = []
        for i, (nb, ks) in enumerate(DORD):
            un = dunit[ks]; hb = 1 if un >= 8 else 0
            out.append([f"ds_read_b64_tr_b16 {fragh(i, u)}, v{vDA + 2*hb + nb} offset:{(un - 4 - 4*hb)*UNIT + u*4*896 + tile*128}" for u in (0, 1)])
        return out
    e.wait(vm=[('G', 0)])
    e("s_barrier")
    npre = cfg.D
    for i in range(npre):
        for t in gr[i]: e.ds(t, ('F', i))
    gunit = [0, 2, 4, 6, 8, 0, 2]
    dg = list(range(1, 22, 3))
    for tile in range(7):
        mf = []; pre = {}
        for i, (b, ks) in enumerate(ORD):
            t = 4*tile + ks
            acc = v(vACC + 16*b, 16)
            mf.append(f"{MF} {acc}, {frag(i)}, {v(vH + 4*t, 4)}, {0 if t == 0 else acc}")
            if b == 0: pre[i] = (lambda t=t: e.wait(vm=[('H', t)]))
        fill = {}
        if tile == 0:
            spread(fill, gu_dma(e, 3, 6) + [lambda t=t: hload(t) for t in range(12, 16)] + gu_dma(e, 4, 8) + [lambda t=t: hload(t) for t in range(16, 20)], list(range(0, 22)))
        elif tile == 1:
            spread(fill, gu_dma(e, 5, 0) + [lambda t=t: hload(t) for t in range(20, 28)] + d_dma(e, 0, 10, 1), list(range(0, 22)))
        elif tile == 2: spread(fill, gu_dma(e, 6, 2), dg)
        elif tile in (3, 4, 5): spread(fill, d_dma(e, 2*(tile-3)+1, 4 + 2*(tile-3), 2), dg)
        if tile < 6:
            d = (gunit[tile+1] - gunit[tile]) * UNIT
            sw = [f"v_add_u32 v{vGA}, {hex(d & 0xffffffff)}, v{vGA}"]
            npre = k1.phase(e, cfg, mf, gr, npre, gr, fill, bar=[('G', tile + 1)], switch=sw, pre=pre)
        else:
            npre = k1.phase(e, cfg, mf, gr, npre, dreads(0), fill, bar=['D'], pre=pre)
    e.nop(6)
    for b in range(7):
        A = vACC + 16*b
        if b == 6: e.nop(2)
        for j in range(8): e(f"v_mul_f32 v{A+j}, v{A+j}, v{A+8+j}")
        for p in range(4): e(f"v_cvt_pk_bf16_f32 v{vHH+4*b+p}, v{A+2*p}, v{A+2*p+1}")
    e("s_nop 0")
    def out_ops(tile):
        A = vOA[tile % 2]; ops = [f"s_mov_b32 s{sT1}, {tile*1024}"]
        for nb in range(2):
            for u in range(2):
                o = vOUT + 8*nb + 4*u
                for p in range(4): ops.append(f"v_cvt_pk_bf16_f32 v{o+p}, v{A+16*nb+8*u+2*p}, v{A+16*nb+8*u+2*p+1}")
                ops.append(lambda o=o, nb=nb, u=u: e.vmem(f"buffer_store_dwordx4 {v(o,4)}, v{vSTO}, {s(S_P,4)}, s{sT1} offen offset:{(4*nb+2*u)*128}", 'ST'))
        return ops
    for tile in range(7):
        A = vOA[tile % 2]
        mf = [f"{MF} {v(A+16*nb,16)}, {frag(i)}, {v(vHH+4*ks,4)}, {0 if ks == 0 else v(A+16*nb,16)}" for i, (nb, ks) in enumerate(DORD)]
        fill = {}
        if tile >= 1: spread(fill, out_ops(tile - 1), list(range(3, 13)))
        npre = k1.phase(e, cfg, mf, dreads(tile), npre, dreads(tile + 1) if tile < 6 else None, fill)
    e.nop(12)
    run(e, out_ops(6))
    e("K2_END:")
    e("s_endpgm")
    k1.NF = 16
    return e
NAME = 'k2_kernel'
DESC = (320, 64, 256)
LAUNCH = f"grid=({GRID},1,1) block=(256,1,1) lds={11*UNIT}"
```

```python
from common import *
GRID = 256
NP = 16
ACC, X, XB, G, S2, SB, P = 16, 32, 48, 56, 72, 88, 104
class Red:
    def __init__(self, final):
        self.final = final
        self.NAME = 'k3_kernel' if final else 'k2a_kernel'
        self.DESC = (232, 40, 232)
        self.LAUNCH = f"grid=({GRID},1,1) block=(256,1,1) lds=512"
    def gen(self):
        fin = self.final
        L = 'K3' if fin else 'K2A'
        e = Em()
        e(f"s_cmp_ge_u32 s2, {GRID}")
        e(f"s_cbranch_scc1 {L}_END")
        e(f"s_load_dwordx2 s[4:5], s[0:1], {ARG['out'] if fin else ARG['x']}")
        e(f"s_load_dwordx2 s[6:7], s[0:1], {ARG['ws']}")
        e("v_lshrrev_b32 v1, 6, v0")
        e("v_and_b32 v2, 63, v0")
        e("v_cmp_gt_u32 vcc, 56, v2")
        e("v_lshrrev_b32 v3, 3, v2")
        e("v_and_b32 v4, 7, v0")
        e("v_mul_u32_u24 v5, 14, v1")
        e("v_add_u32 v5, v5, v3")
        e("v_lshlrev_b32 v6, 7, v5")
        e("v_lshl_add_u32 v6, v4, 4, v6")
        e("v_mov_b32 v7, 0x7fff0000")
        e("v_cndmask_b32 v6, v7, v6, vcc")
        e("v_lshlrev_b32 v8, 5, v5")
        e("v_cndmask_b32 v8, v7, v8, vcc")
        e("v_mul_u32_u24 v9, 896, v4")
        e("v_lshl_add_u32 v9, v5, 4, v9")
        e("v_cndmask_b32 v9, v7, v9, vcc")
        e("v_lshlrev_b32 v10, 4, v0")
        e(f"s_mul_i32 s3, s2, {NP*7168}")
        e(f"s_add_u32 s3, s3, {WS_PART2 if fin else WS_PART}")
        e(f"s_mul_i32 s8, s2, 7168")
        e("s_lshl_b32 s9, s2, 14")
        e(f"s_add_u32 s9, s9, {WS_X1}")
        for i in range(4): e(f"s_movk_i32 s{28+i}, {4096*i}")
        e("s_waitcnt lgkmcnt(0)")
        srd_off(e, 12, 6, 7, "s3", NP*7168)
        def loads(hs):
            for h in hs:
                e(f"s_mov_b32 s10, {h*7168}")
                for c in range(2):
                    e.vmem(f"buffer_load_dwordx4 {v(P+8*h+4*c,4)}, v6, s[12:15], s10 offen offset:{896*c}", ('P', h))
        loads(range(0, NP))
        srd_off(e, 16, 4, 5, "s8", 7168)
        srd(e, 20, 6, 7, 0x10000)
        srd_off(e, 24, 6, 7, "s9", 16384)
        if fin:
            for i in range(4): e.vmem(f"buffer_load_dwordx4 {v(X+4*i,4)}, v10, s[24:27], s{28+i} offen", 'X')
        else:
            for c in range(2): e.vmem(f"buffer_load_dwordx4 {v(XB+4*c,4)}, v9, s[16:19], 0 offen offset:{112*c}", 'X')
        def vec(dst, base, tag):
            e(f"s_movk_i32 s11, {base}")
            for c in range(2):
                for q in range(2):
                    e.vmem(f"buffer_load_dwordx4 {v(dst+8*c+4*q,4)}, v8, s[20:23], s11 offen offset:{224*c+16*q}", tag)
        vec(G, WS_GB if fin else WS_GA, 'G')
        if not fin:
            vec(S2, WS_S2, 'S'); vec(SB, WS_SB, 'S')
            e("s_lshr_b32 s3, s2, 2"); e("s_mul_i32 s3, s3, 28672"); e("s_and_b32 s8, s2, 3"); e("s_lshl_b32 s8, s8, 7")
            e("s_add_u32 s3, s3, s8"); e(f"s_add_u32 s3, s3, {WS_H2}")
            srd_off(e, 32, 6, 7, "s3", 28672)
            e("v_lshlrev_b32 v11, 9, v5"); e("v_lshl_add_u32 v11, v4, 4, v11"); e("v_cndmask_b32 v11, v7, v11, vcc")
            e("v_lshlrev_b32 v12, 5, v4"); e("v_lshl_add_u32 v13, v1, 3, v12")
        for h in range(NP):
            e.wait(vm=[('P', h)])
            for d in range(8):
                r = P + 8*h + d
                if h == 0:
                    e(f"v_lshlrev_b32 v{ACC+2*d}, 16, v{r}"); e(f"v_and_b32 v{ACC+2*d+1}, 0xffff0000, v{r}")
                else:
                    t = 14
                    e(f"v_lshlrev_b32 v{t}, 16, v{r}"); e(f"v_and_b32 v{t+1}, 0xffff0000, v{r}")
                    e(f"v_pk_add_f32 {v(ACC+2*d,2)}, {v(ACC+2*d,2)}, {v(t,2)}")
        e.wait(vm=['X', 'G'])
        if not fin:
            for d in range(8):
                e(f"v_lshlrev_b32 v{X+2*d}, 16, v{XB+d}"); e(f"v_and_b32 v{X+2*d+1}, 0xffff0000, v{XB+d}")
        for i in range(16): e(f"v_fmac_f32 v{X+i}, v{ACC+i}, v{G+i}")
        if fin:
            for d in range(8): e(f"v_cvt_pk_bf16_f32 v{XB+d}, v{X+2*d}, v{X+2*d+1}")
            for c in range(2): e(f"buffer_store_dwordx4 {v(XB+4*c,4)}, v9, s[16:19], 0 offen offset:{112*c}")
        else:
            for i in range(4): e.vmem(f"buffer_store_dwordx4 {v(X+4*i,4)}, v10, s[24:27], s{28+i} offen", 'ST')
            e(f"v_add_f32 v16, v{X}, v{X+1}"); e(f"v_mul_f32 v17, v{X}, v{X}")
            e(f"v_add_f32 v18, v{X+2}, v{X+3}"); e(f"v_mul_f32 v19, v{X+1}, v{X+1}")
            for i in range(4, 16): e(f"v_add_f32 v{16+2*(i&1)}, v{16+2*(i&1)}, v{X+i}")
            for i in range(2, 16): e(f"v_fmac_f32 v{17+2*(i&1)}, v{X+i}, v{X+i}")
            e("v_add_f32 v16, v16, v18"); e("v_add_f32 v17, v17, v19")
            e("s_nop 1")
            e("v_add_f32_dpp v16, v16, v16 row_ror:8 row_mask:0xf bank_mask:0xf")
            e("v_add_f32_dpp v17, v17, v17 row_ror:8 row_mask:0xf bank_mask:0xf")
            for sw in ('v_permlane16_swap_b32', 'v_permlane32_swap_b32'):
                e("v_mov_b32 v18, v16"); e("v_mov_b32 v19, v17"); e("s_nop 1")
                e(f"{sw} v16, v18"); e(f"{sw} v17, v19")
                e("v_add_f32 v16, v16, v18"); e("v_add_f32 v17, v17, v19")
            e("ds_write_b64 v13, v[16:17]")
            e("s_waitcnt lgkmcnt(0)")
            e("s_barrier")
            e("ds_read_b128 v[16:19], v12"); e("ds_read_b128 v[20:23], v12 offset:16")
            e("s_waitcnt lgkmcnt(0)")
            e("v_pk_add_f32 v[16:17], v[16:17], v[18:19]"); e("v_pk_add_f32 v[20:21], v[20:21], v[22:23]")
            e("v_pk_add_f32 v[16:17], v[16:17], v[20:21]")
            e(f"v_mul_f32 v16, {hex(f2u(1/448))}, v16"); e(f"v_mul_f32 v17, {hex(f2u(1/448))}, v17")
            e("v_fma_f32 v17, -v16, v16, v17")
            e("v_max_f32 v17, 0, v17")
            bfround(e, 'v17', 'v17')
            e(f"v_add_f32 v17, {hex(f2u(1e-5))}, v17")
            bfround(e, 'v17', 'v17')
            e("v_sqrt_f32 v17, v17"); e("s_nop 0")
            bfround(e, 'v17', 'v17')
            e("v_rcp_f32 v17, v17")
            bfround(e, 'v16', 'v16')
            e.wait(vm=['S'])
            for i in range(16): e(f"v_mul_f32 v{S2+i}, v{S2+i}, v17")
            for i in range(16): e(f"v_sub_f32 v{G+i}, v{X+i}, v16")
            for i in range(16): e(f"v_fmac_f32 v{SB+i}, v{G+i}, v{S2+i}")
            for d in range(8): e(f"v_cvt_pk_bf16_f32 v{XB+d}, v{SB+2*d}, v{SB+2*d+1}")
            for c in range(2): e(f"buffer_store_dwordx4 {v(XB+4*c,4)}, v11, s[32:35], 0 offen offset:{7*512*c}")
        e(f"{L}_END:")
        e("s_endpgm")
        return e
k2a = Red(False)
k3 = Red(True)
```

```python
import sys, importlib
from common import *
import k0, k1, red, mlp
HEADER = open('adaLN_cond__gqa_block_cached__glu_gated_bilinear__prompt.s.ref').read().split('; Override launch')[0]
FINAL = 'adaLN_cond__gqa_block_cached__glu_gated_bilinear__prompt.s'
def build(mods, path, cfgs={}):
    out = HEADER
    for m in mods: out += f"; @launch kernel={m.NAME} {m.LAUNCH}\n"
    out += '.amdgcn_target "amdgcn-amd-amdhsa--gfx950"\n.text\n'
    for m in mods:
        e = m.gen(cfgs[m.NAME]) if m.NAME in cfgs else m.gen()
        if m.NAME != 'k1_kernel':
            errs = check_hazards(e.lines, m.NAME)
            for x in errs: print('HAZARD', x)
            assert not errs
        out += kernel_head(m.NAME) + e.text()
    out += '.section .rodata,"a"\n'
    for m in mods: out += '.p2align 6\n' + kernel_desc(m.NAME, *m.DESC)
    open(path, 'w').write(out)
    print('wrote', path, len(out), 'bytes')
ALL = [k0, k1, red.k2a, mlp, red.k3]
if __name__ == '__main__':
    class C(k1.Cfg):
        stamps = True
    build(ALL, 't1.s', {'k1_kernel': C})
    build(ALL, FINAL)
    TL.on = True
    build(ALL, 'tl.s')
```

```python
from em import *
import math, struct
def f2u(x): return struct.unpack('<I', struct.pack('<f', x))[0]
C0 = math.log2(math.e) / 16.0
WS_MOD1, WS_GA, WS_S2, WS_SB, WS_GB = 0, 4096, 6144, 8192, 10240
WS_XHAT, WS_H2, WS_X1, WS_HH, WS_PART = 0x10000, 0x200000, 0x400000, 0x800000, 0x1000000
WS_PART2 = 0x7000000
WS_DBG = 0x4000000
ACT_BYTES = 2048 * 448 * 2
ARG = dict(x=0, k=8, v=16, wq=24, wo=32, bx=40, wg=48, wu=56, wd=64, c=72, wmod=80, out=88, dbg=96, ws=104)

def srd(e, d, lo, hi, nbytes):
    e(f"s_mov_b32 s{d}, s{lo}")
    e(f"s_and_b32 s{d+1}, s{hi}, 0xffff")
    e(f"s_mov_b32 s{d+2}, {nbytes}")
    e(f"s_mov_b32 s{d+3}, 0x20000")

def srd_off(e, d, lo, hi, off, nbytes):
    e(f"s_add_u32 s{d}, s{lo}, {off}")
    e(f"s_addc_u32 s{d+1}, s{hi}, 0")
    e(f"s_and_b32 s{d+1}, s{d+1}, 0xffff")
    e(f"s_mov_b32 s{d+2}, {nbytes}")
    e(f"s_mov_b32 s{d+3}, 0x20000")

def bfround(e, dst, src):
    e(f"v_cvt_pk_bf16_f32 {dst}, {src}, {src}")
    e(f"v_and_b32 {dst}, 0xffff0000, {dst}")

def kernel_head(name):
    return f".globl {name}\n.p2align 8\n.type {name},@function\n{name}:\n"

def kernel_desc(name, nvgpr, nsgpr, accum):
    return f""".amdhsa_kernel {name}
  .amdhsa_next_free_vgpr {nvgpr}
  .amdhsa_next_free_sgpr {nsgpr}
  .amdhsa_accum_offset {accum}
  .amdhsa_group_segment_fixed_size 0
  .amdhsa_kernarg_size 112
  .amdhsa_user_sgpr_count 2
  .amdhsa_user_sgpr_kernarg_segment_ptr 1
  .amdhsa_system_sgpr_workgroup_id_x 1
.end_amdhsa_kernel
"""

import os
class TL:
    on = False
WS_TL = 0x6400000
def tl(e, i):
    if TL.on: e(f"s_memrealtime s[{64+2*i}:{65+2*i}]")
def tl_end(e, kidx, ws_lo, ws_hi, n, wavereg=None):
    if not TL.on: return
    e("s_waitcnt vmcnt(0) lgkmcnt(0)")
    tl(e, n)
    e("v_lshrrev_b32 v1, 6, v0")
    e("s_nop 1")
    e("v_readfirstlane_b32 s80, v1")
    e("s_nop 1")
    e("s_lshl2_add_u32 s80, s2, s80")
    e(f"s_add_u32 s80, s80, {kidx*1024}")
    e("s_lshl_b32 s80, s80, 6")
    e(f"s_add_u32 s80, s80, {WS_TL}")
    srd_off(e, 84, ws_lo, ws_hi, "s80", 64)
    e("s_waitcnt lgkmcnt(0)")
    e("s_mov_b64 exec, 1")
    e("v_mov_b32 v1, 0")
    for i in range(n + 1):
        e(f"v_mov_b32 v2, s{64+2*i}"); e(f"v_mov_b32 v3, s{65+2*i}")
        e(f"buffer_store_dwordx2 v[2:3], v1, s[84:87], 0 offen offset:{8*i}")
        e("s_nop 1")
```

```python
from common import *
NMOD = 84
NXH = 64
GRID = NMOD + NXH
def gen():
    e = Em()
    e(f"s_cmp_ge_u32 s2, {GRID}")
    e("s_cbranch_scc1 K0_END")
    tl(e, 0)
    e(f"s_load_dwordx2 s[4:5], s[0:1], {ARG['x']}")
    e(f"s_load_dwordx4 s[8:11], s[0:1], {ARG['c']}")
    e(f"s_load_dwordx2 s[6:7], s[0:1], {ARG['ws']}")
    e(f"s_cmp_ge_u32 s2, {NMOD}")
    e("s_cbranch_scc1 K0_XHAT")
    e("s_and_b32 s3, s2, 7")
    e("s_lshl_b32 s3, s3, 1")
    e("s_bfe_u32 s12, s2, 0x10003")
    e("s_add_u32 s3, s3, s12")
    e("s_and_b32 s12, s2, 0x70")
    e("s_add_u32 s3, s3, s12")
    e("s_cmp_ge_u32 s2, 80")
    e("s_cselect_b32 s3, s2, s3")
    e("v_lshrrev_b32 v1, 2, v0")
    e("v_and_b32 v2, 3, v0")
    e("s_movk_i32 s12, 5376")
    e("v_mul_lo_u32 v3, v1, s12")
    e("v_lshl_add_u32 v3, v2, 4, v3")
    e("s_lshl_b32 s13, s3, 6")
    e("v_lshlrev_b32 v4, 1, v1")
    e("s_waitcnt lgkmcnt(0)")
    srd(e, 16, 10, 11, 448 * 5376)
    srd(e, 20, 8, 9, 896)
    srd(e, 24, 6, 7, 0x10000)
    for i in range(7):
        if i: e(f"s_add_u32 s13, s13, {64*5376}")
        e.vmem(f"buffer_load_dwordx4 {v(16+4*i,4)}, v3, s[16:19], s13 offen", ('w', i))
    for i in range(7):
        e.vmem(f"buffer_load_short_d16_hi v{8+i}, v4, s[20:23], 0 offen offset:{128*i}", ('c', i))
    e("s_mul_i32 s14, s3, 4682")
    e("s_lshr_b32 s14, s14, 16")
    e("s_mul_i32 s15, s14, 14")
    e("s_sub_u32 s15, s3, s15")
    e.wait(vm=[('c', 6)])
    for i in range(7): e(f"v_and_b32 v{8+i}, 0xffff0000, v{8+i}")
    for i in range(7): e(f"v_mul_f32 v{48+i}, {hex(f2u(-math.log2(math.e)))}, v{8+i}")
    for i in range(7): e(f"v_exp_f32 v{48+i}, v{48+i}")
    for i in range(7): e(f"v_add_f32 v{48+i}, 1.0, v{48+i}")
    for i in range(7): e(f"v_rcp_f32 v{48+i}, v{48+i}")
    for i in range(7): e(f"v_mul_f32 v{8+i}, v{8+i}, v{48+i}")
    for i in range(7): bfround(e, f"v{8+i}", f"v{8+i}")
    for i in range(7):
        for p in range(4):
            w = 16 + 4*i + p
            e(f"v_lshlrev_b32 v56, 16, v{w}")
            e(f"v_and_b32 v57, 0xffff0000, v{w}")
            if i == 0:
                e(f"v_mul_f32 v{48+2*p}, v56, v8")
                e(f"v_mul_f32 v{49+2*p}, v57, v8")
            else:
                e(f"v_fmac_f32 v{48+2*p}, v56, v{8+i}")
                e(f"v_fmac_f32 v{49+2*p}, v57, v{8+i}")
    e("v_lshlrev_b32 v5, 5, v0")
    e("ds_write_b128 v5, v[48:51]")
    e("ds_write_b128 v5, v[52:55] offset:16")
    e("s_waitcnt lgkmcnt(0)")
    e("s_barrier")
    e("v_cmp_gt_u32 vcc, 64, v0")
    e("s_and_saveexec_b64 s[28:29], vcc")
    e("s_cbranch_execz K0_END")
    e("v_and_b32 v1, 31, v0")
    e("v_lshrrev_b32 v2, 5, v0")
    e("v_lshlrev_b32 v5, 2, v1")
    e("v_lshl_add_u32 v5, v2, 12, v5")
    e("v_add_u32 v6, 128, v5")
    for i in range(8):
        e(f"ds_read2st64_b32 {v(16+4*i,2)}, v5 offset0:{2*i} offset1:{2*i+1}")
        e(f"ds_read2st64_b32 {v(18+4*i,2)}, v6 offset0:{2*i} offset1:{2*i+1}")
    e("s_cmp_eq_u32 s14, 1")
    e("s_cselect_b32 s20, 1.0, 0")
    e("s_cmp_eq_u32 s14, 4")
    e("s_cselect_b32 s20, 1.0, s20")
    e("s_cmp_lt_u32 s14, 2")
    e(f"s_cselect_b32 s21, {hex(f2u(C0))}, 1.0")
    e("s_cselect_b32 s22, 64, 32")
    e("s_mov_b32 s23, 32")
    for sec, base in ((1, 0), (2, WS_GA), (3, WS_SB), (4, WS_S2), (5, WS_GB)):
        e(f"s_cmp_eq_u32 s14, {sec}")
        e(f"s_cselect_b32 s23, {base}, s23")
    e("s_lshl_b32 s15, s15, 2")
    e("v_lshrrev_b32 v7, 3, v1")
    e("v_add_u32 v7, s15, v7")
    e("v_mul_lo_u32 v7, v7, s22")
    e("v_and_b32 v8, 7, v1")
    e("v_lshl_add_u32 v7, v8, 2, v7")
    e("s_waitcnt lgkmcnt(0)")
    n = 32; base = 16
    while n > 1:
        for i in range(n // 2): e(f"v_add_f32 v{base+i}, v{base+2*i}, v{base+2*i+1}")
        n //= 2
    e("v_mov_b32 v17, v16")
    e("s_nop 1")
    e("v_permlane32_swap_b32 v16, v17")
    e("v_add_f32 v16, v16, v17")
    bfround(e, "v16", "v16")
    e("v_add_f32 v16, s20, v16")
    bfround(e, "v16", "v16")
    e("v_mul_f32 v16, s21, v16")
    e("v_cmp_gt_u32 vcc, 32, v0")
    e("s_and_b64 exec, exec, vcc")
    e("buffer_store_dword v16, v7, s[24:27], s23 offen")
    tl_end(e, 0, 6, 7, 1)
    e("s_endpgm")
    e("K0_XHAT:")
    e(f"s_sub_u32 s3, s2, {NMOD}")
    e("v_lshrrev_b32 v1, 3, v0")
    e("v_and_b32 v2, 7, v0")
    e("s_movk_i32 s12, 896")
    e("v_mul_lo_u32 v3, v1, s12")
    e("v_lshl_add_u32 v3, v2, 4, v3")
    e(f"s_mul_i32 s13, s3, {32*896}")
    e("v_lshlrev_b32 v4, 9, v2")
    e("v_lshl_add_u32 v4, v1, 4, v4")
    e("s_waitcnt lgkmcnt(0)")
    srd(e, 16, 4, 5, ACT_BYTES)
    srd_off(e, 24, 6, 7, WS_XHAT, ACT_BYTES)
    for i in range(7):
        e.vmem(f"buffer_load_dwordx4 {v(8+4*i,4)}, v3, s[16:19], s13 offen offset:{128*i}", ('x', i))
    X = 40
    for i in range(7):
        e.wait(vm=[('x', i)])
        for p in range(4):
            e(f"v_lshlrev_b32 v{X+8*i+2*p}, 16, v{8+4*i+p}")
            e(f"v_and_b32 v{X+8*i+2*p+1}, 0xffff0000, v{8+4*i+p}")
    ln_stats(e, X, 56, 'v5', 'v6', tmp=8)
    for i in range(7):
        for p in range(8): e(f"v_sub_f32 v{X+8*i+p}, v{X+8*i+p}, v5")
        for p in range(8): e(f"v_mul_f32 v{X+8*i+p}, v{X+8*i+p}, v6")
        for p in range(4): e(f"v_cvt_pk_f16_f32 v{8+4*i+p}, v{X+8*i+2*p}, v{X+8*i+2*p+1}")
        if i: e(f"s_add_u32 s13, s13, 4096")
        e(f"buffer_store_dwordx4 {v(8+4*i,4)}, v4, s[24:27], s13 offen")
    tl_end(e, 0, 6, 7, 1)
    e("K0_END:")
    e("s_endpgm")
    return e

def red8(e, r, t):
    e("s_nop 1")
    e(f"v_add_f32_dpp {r}, {r}, {r} quad_perm:[1,0,3,2] row_mask:0xf bank_mask:0xf")
    e("s_nop 1")
    e(f"v_add_f32_dpp {r}, {r}, {r} quad_perm:[2,3,0,1] row_mask:0xf bank_mask:0xf")
    e("s_nop 1")
    e(f"v_add_f32_dpp {r}, {r}, {r} row_half_mirror row_mask:0xf bank_mask:0xf")

def ln_stats(e, X, n, mean, rinv, tmp):
    t = [f"v{tmp+i}" for i in range(4)]
    for i in range(4): e(f"v_add_f32 {t[i]}, v{X+i}, v{X+4+i}")
    for i in range(8, n): e(f"v_add_f32 {t[i%4]}, {t[i%4]}, v{X+i}")
    e(f"v_add_f32 {t[0]}, {t[0]}, {t[1]}"); e(f"v_add_f32 {t[2]}, {t[2]}, {t[3]}")
    e(f"v_add_f32 {mean}, {t[0]}, {t[2]}")
    red8(e, mean, None)
    e(f"v_mul_f32 {mean}, {hex(f2u(1/448))}, {mean}")
    for i in range(n):
        e(f"v_sub_f32 {rinv}, v{X+i}, {mean}")
        if i < 4: e(f"v_mul_f32 {t[i]}, {rinv}, {rinv}")
        else: e(f"v_fmac_f32 {t[i%4]}, {rinv}, {rinv}")
    e(f"v_add_f32 {t[0]}, {t[0]}, {t[1]}"); e(f"v_add_f32 {t[2]}, {t[2]}, {t[3]}")
    e(f"v_add_f32 {rinv}, {t[0]}, {t[2]}")
    red8(e, rinv, None)
    e(f"v_mul_f32 {rinv}, {hex(f2u(1/448))}, {rinv}")
    bfround(e, rinv, rinv)
    e(f"v_add_f32 {rinv}, {hex(f2u(1e-5))}, {rinv}")
    bfround(e, rinv, rinv)
    e(f"v_sqrt_f32 {rinv}, {rinv}")
    e("s_nop 0")
    bfround(e, rinv, rinv)
    e(f"v_rcp_f32 {rinv}, {rinv}")
    bfround(e, mean, mean)
NAME = 'k0_kernel'
DESC = (96, 96, 96)
LAUNCH = f"grid=({GRID},1,1) block=(256,1,1) lds=8192"
```

```python
from common import *
import k1
from k1 import run, spread, dma, MF
GRID = 256
UNIT = 14464
NF = 14
aF = 0
S_G, S_D, S_H, S_P = 8, 12, 16, 20
sW, sGOFF, sLB, sT0, sT1, sDL, sDG = 3, 24, 25, 26, 27, 28, 29
vGD = 8
vDD = 16
vGA = 24
vDA = 25
vSTO = 29
vH = 32
vACC = 144
vHH = 32
vOA = [64, 96]
vOUT = 128
class Cfg(k1.Cfg):
    D = 6; WG = 2; CAP = 3; BARG = 23; BARL = 3

def fragh(i, u): return a(aF + 4 * (i % NF) + 2 * u, 2)
def frag(i): return a(aF + 4 * (i % NF), 4)

def gu_dma(e, tile, unit):
    ops = []
    for q in range(7):
        g = []
        if q == 0: g.append(f"s_add_u32 s{sT0}, s{sGOFF}, {tile*64*3584}")
        if q % 4 == 0: g += [f"s_add_u32 m0, s{sLB}, {unit*UNIT + 4096*(q//4)}", "s_nop 0"]
        g.append(lambda q=q: dma(e, vGD + q, S_G, sT0, 1024*(q & 3), ('G', tile)))
        ops.append(g)
    return ops
def d_dma(e, ks0, unit0, n):
    ops = []
    for q in range(7):
        g = []
        if q == 0: g.append(f"s_add_u32 s{sT1}, s{sDG if n == 2 else sDG+1}, {ks0*14336}")
        if q % 4 == 0: g += [f"s_add_u32 m0, s{sDL if n == 2 else sDG+1}, {unit0*UNIT + 4096*(q//4)}", "s_nop 0"]
        g.append(lambda q=q: dma(e, vDD + q, S_D, sT1, 1024*(q & 3), 'D'))
        ops.append(g)
    return ops

def gen(cfg=Cfg):
    k1.NF = NF
    e = Em()
    e(f"s_cmp_ge_u32 s2, {GRID}")
    e("s_cbranch_scc1 K2_END")
    tl(e, 0)
    e(f"s_load_dwordx4 s[48:51], s[0:1], {ARG['wg']}")
    e(f"s_load_dwordx2 s[52:53], s[0:1], {ARG['wd']}")
    e(f"s_load_dwordx2 s[56:57], s[0:1], {ARG['ws']}")
    e("v_lshrrev_b32 v1, 6, v0")
    e("v_and_b32 v2, 63, v0")
    e(f"v_readfirstlane_b32 s{sW}, v1")
    e("s_and_b32 s4, s2, 7")
    e("s_bfe_u32 s5, s2, 0x10003")
    e("s_lshl_b32 s6, s4, 1")
    e("s_add_u32 s5, s5, s6")
    e("s_lshr_b32 s6, s2, 4")
    e("v_lshrrev_b32 v3, 5, v2")
    e("v_and_b32 v30, 31, v2")
    e("s_movk_i32 s7, 4682")
    e(f"s_movk_i32 s{sT0}, {3584 - 14*16}")
    for q in range(7):
        e(f"v_add_u32 v4, {64*q}, v2")
        e("v_mul_lo_u32 v5, v4, s7")
        e("v_lshrrev_b32 v5, 16, v5")
        e(f"v_mul_lo_u32 v5, v5, s{sT0}")
        e(f"v_lshl_add_u32 v{vGD+q}, v4, 4, v5")
        if q & 3: e(f"v_subrev_u32 v{vGD+q}, {1024*(q&3)}, v{vGD+q}")
    e(f"s_and_b32 s{sT0}, s{sW}, 1")
    e(f"s_mul_i32 s{sGOFF}, s{sT0}, {32*3584}")
    e(f"s_mul_i32 s{sLB}, s{sT0}, 7168")
    e(f"s_mov_b32 s{sDG+1}, s{sLB}")
    e(f"s_lshr_b32 s{sT1}, s{sW}, 1")
    e(f"s_mul_i32 s7, s{sT1}, {UNIT}")
    e(f"s_add_u32 s{sLB}, s{sLB}, s7")
    e(f"s_mov_b32 s{sDL}, s{sLB}")
    e(f"s_mul_i32 s{sDG}, s{sW}, 7168")
    e(f"s_mul_i32 s7, s5, 224")
    e("v_lshlrev_b32 v6, 4, v2")
    e(f"s_lshl2_add_u32 s40, s6, s{sW}")
    e(f"s_mul_i32 s31, s40, 28672")
    e(f"s_add_u32 s31, s31, {WS_H2}")
    e(f"s_cmp_eq_u32 s{sT1}, 0")
    e("s_waitcnt lgkmcnt(0)")
    e("s_cselect_b32 s48, s48, s50")
    e("s_cselect_b32 s49, s49, s51")
    srd_off(e, S_G, 48, 49, "s7", 447*3584 + 224)
    srd_off(e, S_H, 56, 57, "s31", 28672)
    def hload(t):
        e.vmem(f"buffer_load_dwordx4 {v(vH+4*t,4)}, v6, {s(S_H,4)}, s{32 + t//4} offen offset:{1024*(t%4)}", ('H', t))
    for i in range(7): e(f"s_movk_i32 s{32+i}, {4096*i}")
    run(e, gu_dma(e, 0, 0))
    for t in range(4): hload(t)
    run(e, gu_dma(e, 1, 2))
    for t in range(4, 8): hload(t)
    run(e, gu_dma(e, 2, 4))
    for t in range(8, 12): hload(t)
    e("s_movk_i32 s7, 1171")
    for q in range(7):
        e(f"v_add_u32 v4, {64*q}, v2")
        e("v_mul_lo_u32 v5, v4, s7")
        e("v_bfe_u32 v5, v5, 17, 1")
        e("v_lshlrev_b32 v5, 6, v5")
        e("v_lshlrev_b32 v4, 4, v4")
        e(f"v_xor_b32 v{vDD+q}, v4, v5")
        if q & 3: e(f"v_subrev_u32 v{vDD+q}, {1024*(q&3)}, v{vDD+q}")
    e(f"s_mul_i32 s7, s5, {112*896}")
    srd_off(e, S_D, 52, 53, "s7", 112*896)
    e(f"s_lshl_b32 s7, s40, 6")
    e(f"s_add_u32 s7, s7, s5")
    e(f"s_mul_i32 s7, s7, 7168")
    e(f"s_add_u32 s7, s7, {WS_PART2}")
    srd_off(e, S_P, 56, 57, "s7", 3*16*7168 + 7168)
    e("v_bfe_u32 v1, v2, 2, 2")
    e("v_and_b32 v4, 1, v2"); e("v_lshlrev_b32 v4, 4, v4"); e("v_bfe_u32 v5, v2, 1, 1"); e("v_lshl_add_u32 v4, v5, 3, v4")
    e("v_lshl_add_u32 v5, v3, 3, v1"); e("v_mul_u32_u24 v7, 224, v5"); e("v_add_u32 v7, v7, v4")
    e("v_bfe_u32 v31, v2, 4, 1")
    e(f"v_mul_u32_u24 v{vGA}, {UNIT}, v31"); e(f"v_add_u32 v{vGA}, v{vGA}, v7")
    e("v_mul_u32_u24 v7, 896, v5"); e("v_add_u32 v7, v7, v4"); e("v_lshl_add_u32 v7, v31, 5, v7")
    e("v_lshrrev_b32 v1, 1, v1")
    e(f"v_lshl_add_u32 v{vDA}, v1, 6, v7"); e("v_xor_b32 v1, 1, v1"); e(f"v_lshl_add_u32 v{vDA+1}, v1, 6, v7")
    e(f"v_add_u32 v{vDA+2}, {8*UNIT}, v{vDA}"); e(f"v_add_u32 v{vDA+3}, {8*UNIT}, v{vDA+1}")
    e(f"v_add_u32 v{vDA}, {4*UNIT}, v{vDA}"); e(f"v_add_u32 v{vDA+1}, {4*UNIT}, v{vDA+1}")
    e("v_lshrrev_b32 v1, 3, v30"); e(f"s_mov_b32 s7, 114688"); e(f"v_mul_lo_u32 v1, v1, s7")
    e("v_lshl_add_u32 v1, v3, 7, v1"); e("v_and_b32 v31, 7, v2"); e(f"v_lshl_add_u32 v{vSTO}, v31, 4, v1")
    ORD = [(b, ks) for ks in range(4) for b in range(7)]
    gr = [[f"ds_read_b64_tr_b16 {fragh(i, u)}, v{vGA} offset:{ks*16*224 + u*4*224 + b*32}" for u in (0, 1)] for i, (b, ks) in enumerate(ORD)]
    dunit = [10, 4, 5, 6, 7, 8, 9]
    DORD = [(nb, ks) for ks in range(7) for nb in range(2)]
    def dreads(tile):
        out = []
        for i, (nb, ks) in enumerate(DORD):
            un = dunit[ks]; hb = 1 if un >= 8 else 0
            out.append([f"ds_read_b64_tr_b16 {fragh(i, u)}, v{vDA + 2*hb + nb} offset:{(un - 4 - 4*hb)*UNIT + u*4*896 + tile*128}" for u in (0, 1)])
        return out
    tl(e, 1)
    e.wait(vm=[('G', 0)])
    e("s_barrier")
    tl(e, 2)
    npre = cfg.D
    for i in range(npre):
        for t in gr[i]: e.ds(t, ('F', i))
    gunit = [0, 2, 4, 6, 8, 0, 2]
    dg = list(range(1, 22, 3))
    for tile in range(7):
        mf = []; pre = {}
        for i, (b, ks) in enumerate(ORD):
            t = 4*tile + ks
            acc = v(vACC + 16*b, 16)
            mf.append(f"{MF} {acc}, {frag(i)}, {v(vH + 4*t, 4)}, {0 if t == 0 else acc}")
            if b == 0: pre[i] = (lambda t=t: e.wait(vm=[('H', t)]))
        fill = {}
        if tile == 0:
            spread(fill, gu_dma(e, 3, 6) + [lambda t=t: hload(t) for t in range(12, 16)] + gu_dma(e, 4, 8) + [lambda t=t: hload(t) for t in range(16, 20)], list(range(0, 22)))
        elif tile == 1:
            spread(fill, gu_dma(e, 5, 0) + [lambda t=t: hload(t) for t in range(20, 28)] + d_dma(e, 0, 10, 1), list(range(0, 22)))
        elif tile == 2: spread(fill, gu_dma(e, 6, 2), dg)
        elif tile in (3, 4, 5): spread(fill, d_dma(e, 2*(tile-3)+1, 4 + 2*(tile-3), 2), dg)
        if tile < 6:
            d = (gunit[tile+1] - gunit[tile]) * UNIT
            sw = [f"v_add_u32 v{vGA}, {hex(d & 0xffffffff)}, v{vGA}"]
            npre = k1.phase(e, cfg, mf, gr, npre, gr, fill, bar=[('G', tile + 1)], switch=sw, pre=pre)
        else:
            npre = k1.phase(e, cfg, mf, gr, npre, dreads(0), fill, bar=['D'], pre=pre)
    tl(e, 3)
    e.nop(6)
    for b in range(7):
        A = vACC + 16*b
        if b == 6: e.nop(2)
        for j in range(8): e(f"v_mul_f32 v{A+j}, v{A+j}, v{A+8+j}")
        for p in range(4): e(f"v_cvt_pk_bf16_f32 v{vHH+4*b+p}, v{A+2*p}, v{A+2*p+1}")
    e("s_nop 0")
    def out_ops(tile):
        A = vOA[tile % 2]; ops = [f"s_mov_b32 s{sT1}, {tile*1024}"]
        for nb in range(2):
            for u in range(2):
                o = vOUT + 8*nb + 4*u
                for p in range(4): ops.append(f"v_cvt_pk_bf16_f32 v{o+p}, v{A+16*nb+8*u+2*p}, v{A+16*nb+8*u+2*p+1}")
                ops.append(lambda o=o, nb=nb, u=u: e.vmem(f"buffer_store_dwordx4 {v(o,4)}, v{vSTO}, {s(S_P,4)}, s{sT1} offen offset:{(4*nb+2*u)*128}", 'ST'))
        return ops
    for tile in range(7):
        A = vOA[tile % 2]
        mf = [f"{MF} {v(A+16*nb,16)}, {frag(i)}, {v(vHH+4*ks,4)}, {0 if ks == 0 else v(A+16*nb,16)}" for i, (nb, ks) in enumerate(DORD)]
        fill = {}
        if tile >= 1: spread(fill, out_ops(tile - 1), list(range(3, 13)))
        npre = k1.phase(e, cfg, mf, dreads(tile), npre, dreads(tile + 1) if tile < 6 else None, fill)
    e.nop(12)
    run(e, out_ops(6))
    tl(e, 4)
    tl_end(e, 3, 56, 57, 5)
    e("K2_END:")
    e("s_endpgm")
    k1.NF = 16
    return e
NAME = 'k2_kernel'
DESC = (320, 96, 256)
LAUNCH = f"grid=({GRID},1,1) block=(256,1,1) lds={11*UNIT}"
```

```python
from common import *
GRID = 256
NP = 16
ACC, X, XB, G, S2, SB, P = 16, 32, 48, 56, 72, 88, 104
class Red:
    def __init__(self, final):
        self.final = final
        self.NAME = 'k3_kernel' if final else 'k2a_kernel'
        self.DESC = (232, 96, 232)
        self.LAUNCH = f"grid=({GRID},1,1) block=(256,1,1) lds=512"
    def gen(self):
        fin = self.final
        L = 'K3' if fin else 'K2A'
        e = Em()
        e(f"s_cmp_ge_u32 s2, {GRID}")
        e(f"s_cbranch_scc1 {L}_END")
        tl(e, 0)
        e(f"s_load_dwordx2 s[4:5], s[0:1], {ARG['out'] if fin else ARG['x']}")
        e(f"s_load_dwordx2 s[6:7], s[0:1], {ARG['ws']}")
        e("v_lshrrev_b32 v1, 6, v0")
        e("v_and_b32 v2, 63, v0")
        e("v_cmp_gt_u32 vcc, 56, v2")
        e("v_lshrrev_b32 v3, 3, v2")
        e("v_and_b32 v4, 7, v0")
        e("v_mul_u32_u24 v5, 14, v1")
        e("v_add_u32 v5, v5, v3")
        e("v_lshlrev_b32 v6, 7, v5")
        e("v_lshl_add_u32 v6, v4, 4, v6")
        e("v_mov_b32 v7, 0x7fff0000")
        e("v_cndmask_b32 v6, v7, v6, vcc")
        e("v_lshlrev_b32 v8, 5, v5")
        e("v_cndmask_b32 v8, v7, v8, vcc")
        e("v_mul_u32_u24 v9, 896, v4")
        e("v_lshl_add_u32 v9, v5, 4, v9")
        e("v_cndmask_b32 v9, v7, v9, vcc")
        e("v_lshlrev_b32 v10, 4, v0")
        e(f"s_mul_i32 s3, s2, {NP*7168}")
        e(f"s_add_u32 s3, s3, {WS_PART2 if fin else WS_PART}")
        e(f"s_mul_i32 s8, s2, 7168")
        e("s_lshl_b32 s9, s2, 14")
        e(f"s_add_u32 s9, s9, {WS_X1}")
        for i in range(4): e(f"s_movk_i32 s{28+i}, {4096*i}")
        e("s_waitcnt lgkmcnt(0)")
        srd_off(e, 12, 6, 7, "s3", NP*7168)
        def loads(hs):
            for h in hs:
                e(f"s_mov_b32 s10, {h*7168}")
                for c in range(2):
                    e.vmem(f"buffer_load_dwordx4 {v(P+8*h+4*c,4)}, v6, s[12:15], s10 offen offset:{896*c}", ('P', h))
        loads(range(0, NP))
        srd_off(e, 16, 4, 5, "s8", 7168)
        srd(e, 20, 6, 7, 0x10000)
        srd_off(e, 24, 6, 7, "s9", 16384)
        if fin:
            for i in range(4): e.vmem(f"buffer_load_dwordx4 {v(X+4*i,4)}, v10, s[24:27], s{28+i} offen", 'X')
        else:
            for c in range(2): e.vmem(f"buffer_load_dwordx4 {v(XB+4*c,4)}, v9, s[16:19], 0 offen offset:{112*c}", 'X')
        def vec(dst, base, tag):
            e(f"s_movk_i32 s11, {base}")
            for c in range(2):
                for q in range(2):
                    e.vmem(f"buffer_load_dwordx4 {v(dst+8*c+4*q,4)}, v8, s[20:23], s11 offen offset:{224*c+16*q}", tag)
        vec(G, WS_GB if fin else WS_GA, 'G')
        if not fin:
            vec(S2, WS_S2, 'S'); vec(SB, WS_SB, 'S')
            e("s_lshr_b32 s3, s2, 2"); e("s_mul_i32 s3, s3, 28672"); e("s_and_b32 s8, s2, 3"); e("s_lshl_b32 s8, s8, 7")
            e("s_add_u32 s3, s3, s8"); e(f"s_add_u32 s3, s3, {WS_H2}")
            srd_off(e, 32, 6, 7, "s3", 28672)
            e("v_lshlrev_b32 v11, 9, v5"); e("v_lshl_add_u32 v11, v4, 4, v11"); e("v_cndmask_b32 v11, v7, v11, vcc")
            e("v_lshlrev_b32 v12, 5, v4"); e("v_lshl_add_u32 v13, v1, 3, v12")
        for h in range(NP):
            e.wait(vm=[('P', h)])
            if h == 0: tl(e, 1)
            if h == NP-1: tl(e, 2)
            for d in range(8):
                r = P + 8*h + d
                if h == 0:
                    e(f"v_lshlrev_b32 v{ACC+2*d}, 16, v{r}"); e(f"v_and_b32 v{ACC+2*d+1}, 0xffff0000, v{r}")
                else:
                    t = 14
                    e(f"v_lshlrev_b32 v{t}, 16, v{r}"); e(f"v_and_b32 v{t+1}, 0xffff0000, v{r}")
                    e(f"v_pk_add_f32 {v(ACC+2*d,2)}, {v(ACC+2*d,2)}, {v(t,2)}")
        e.wait(vm=['X', 'G'])
        if not fin:
            for d in range(8):
                e(f"v_lshlrev_b32 v{X+2*d}, 16, v{XB+d}"); e(f"v_and_b32 v{X+2*d+1}, 0xffff0000, v{XB+d}")
        for i in range(16): e(f"v_fmac_f32 v{X+i}, v{ACC+i}, v{G+i}")
        if fin:
            for d in range(8): e(f"v_cvt_pk_bf16_f32 v{XB+d}, v{X+2*d}, v{X+2*d+1}")
            for c in range(2): e(f"buffer_store_dwordx4 {v(XB+4*c,4)}, v9, s[16:19], 0 offen offset:{112*c}")
        else:
            for i in range(4): e.vmem(f"buffer_store_dwordx4 {v(X+4*i,4)}, v10, s[24:27], s{28+i} offen", 'ST')
            e(f"v_add_f32 v16, v{X}, v{X+1}"); e(f"v_mul_f32 v17, v{X}, v{X}")
            e(f"v_add_f32 v18, v{X+2}, v{X+3}"); e(f"v_mul_f32 v19, v{X+1}, v{X+1}")
            for i in range(4, 16): e(f"v_add_f32 v{16+2*(i&1)}, v{16+2*(i&1)}, v{X+i}")
            for i in range(2, 16): e(f"v_fmac_f32 v{17+2*(i&1)}, v{X+i}, v{X+i}")
            e("v_add_f32 v16, v16, v18"); e("v_add_f32 v17, v17, v19")
            e("s_nop 1")
            e("v_add_f32_dpp v16, v16, v16 row_ror:8 row_mask:0xf bank_mask:0xf")
            e("v_add_f32_dpp v17, v17, v17 row_ror:8 row_mask:0xf bank_mask:0xf")
            for sw in ('v_permlane16_swap_b32', 'v_permlane32_swap_b32'):
                e("v_mov_b32 v18, v16"); e("v_mov_b32 v19, v17"); e("s_nop 1")
                e(f"{sw} v16, v18"); e(f"{sw} v17, v19")
                e("v_add_f32 v16, v16, v18"); e("v_add_f32 v17, v17, v19")
            e("ds_write_b64 v13, v[16:17]")
            e("s_waitcnt lgkmcnt(0)")
            e("s_barrier")
            e("ds_read_b128 v[16:19], v12"); e("ds_read_b128 v[20:23], v12 offset:16")
            e("s_waitcnt lgkmcnt(0)")
            e("v_pk_add_f32 v[16:17], v[16:17], v[18:19]"); e("v_pk_add_f32 v[20:21], v[20:21], v[22:23]")
            e("v_pk_add_f32 v[16:17], v[16:17], v[20:21]")
            e(f"v_mul_f32 v16, {hex(f2u(1/448))}, v16"); e(f"v_mul_f32 v17, {hex(f2u(1/448))}, v17")
            e("v_fma_f32 v17, -v16, v16, v17")
            e("v_max_f32 v17, 0, v17")
            bfround(e, 'v17', 'v17')
            e(f"v_add_f32 v17, {hex(f2u(1e-5))}, v17")
            bfround(e, 'v17', 'v17')
            e("v_sqrt_f32 v17, v17"); e("s_nop 0")
            bfround(e, 'v17', 'v17')
            e("v_rcp_f32 v17, v17")
            bfround(e, 'v16', 'v16')
            e.wait(vm=['S'])
            for i in range(16): e(f"v_mul_f32 v{S2+i}, v{S2+i}, v17")
            for i in range(16): e(f"v_sub_f32 v{G+i}, v{X+i}, v16")
            for i in range(16): e(f"v_fmac_f32 v{SB+i}, v{G+i}, v{S2+i}")
            for d in range(8): e(f"v_cvt_pk_bf16_f32 v{XB+d}, v{SB+2*d}, v{SB+2*d+1}")
            for c in range(2): e(f"buffer_store_dwordx4 {v(XB+4*c,4)}, v11, s[32:35], 0 offen offset:{7*512*c}")
        tl_end(e, 4 if fin else 2, 6, 7, 3)
        e(f"{L}_END:")
        e("s_endpgm")
        return e
k2a = Red(False)
k3 = Red(True)
```

```python
from build import *
class Nop:
    NAME = 'nop_kernel'; DESC = (8, 16, 8); LAUNCH = "grid=(256,1,1) block=(256,1,1) lds=0"
    @staticmethod
    def gen():
        e = Em(); e("s_endpgm"); return e
build(ALL, 'e_a.s')
build([Nop] + ALL, 'e_b.s')
build(ALL + [Nop], 'e_c.s')
```

```python
from common import *
GRID = 224
MF = "v_mfma_f32_32x32x16_bf16"
S_D, S_H, S_X, S_O, S_M = 8, 12, 16, 20, 24
sW, sLB, sT0, sT1 = 3, 28, 29, 30
sUD, sUB = 32, 40
vDM, vBO, vAA, vXR, vXW, vOO, vGO, vX1, vGB, vF, vACC, vR = 8, 12, 14, 16, 19, 20, 21, 24, 32, 48, 80, 144
WREG = 40960
class Cfg:
    rot = True
    ahead = 3
    sflag = ''
def gen(cfg=Cfg):
    e = Em()
    e(f"s_cmp_ge_u32 s2, {GRID}")
    e("s_cbranch_scc1 K3_END")
    tl(e, 0)
    e(f"s_load_dwordx2 s[52:53], s[0:1], {ARG['wd']}")
    e(f"s_load_dwordx2 s[56:57], s[0:1], {ARG['ws']}")
    e(f"s_load_dwordx2 s[54:55], s[0:1], {ARG['out']}")
    e("v_lshrrev_b32 v1, 6, v0"); e("v_and_b32 v2, 63, v0")
    e("s_and_b32 s4, s2, 7"); e("s_bfe_u32 s5, s2, 0x20003")
    e(f"v_readfirstlane_b32 s{sW}, v1")
    e("s_lshl2_add_u32 s4, s4, s5")
    e("s_lshr_b32 s6, s2, 5")
    e("v_lshrrev_b32 v3, 3, v2"); e("v_mul_u32_u24 v4, 896, v3"); e("v_and_b32 v3, 2, v3"); e("v_lshlrev_b32 v3, 1, v3")
    e("v_and_b32 v5, 7, v2"); e("v_xor_b32 v3, v3, v5"); e(f"v_lshl_add_u32 v{vDM}, v3, 4, v4")
    for q in range(1, 4): e(f"v_add_u32 v{vDM+q}, {q*(7168-1024)}, v{vDM}")
    e(f"s_mul_i32 s{sLB}, s{sW}, {WREG}")
    if cfg.rot:
        e("s_lshl1_add_u32 s7, s5, s6"); e("s_cmp_ge_u32 s7, 7"); e("s_cselect_b32 s48, 7, 0"); e("s_sub_u32 s7, s7, s48")
    else: e("s_mov_b32 s7, 0")
    e(f"s_mul_i32 s{sT0}, s{sW}, {448*896}")
    for u in range(7):
        if u: e("s_add_u32 s7, s7, 1"); e("s_cmp_eq_u32 s7, 7"); e("s_cselect_b32 s7, 0, s7")
        e(f"s_mul_i32 s{sUD+u}, s7, {64*896}"); e(f"s_add_u32 s{sUD+u}, s{sUD+u}, s{sT0}"); e(f"s_lshl_b32 s{sUB+u}, s7, 12")
    e(f"s_lshr_b32 s{sT1}, s{sW}, 1"); e(f"s_mul_i32 s{sT1}, s{sT1}, 114688")
    e(f"v_lshl_add_u32 v{vBO}, v2, 4, s{sT1}"); e(f"v_xor_b32 v{vBO+1}, 114688, v{vBO}")
    e(f"s_mul_i32 s48, s4, 229376"); e(f"s_mul_i32 s49, s{sW}, 28672"); e("s_add_u32 s48, s48, s49"); e(f"s_add_u32 s48, s48, {WS_HH}")
    e("s_lshl_b32 s49, s6, 7")
    e("s_waitcnt lgkmcnt(0)")
    srd_off(e, S_D, 52, 53, "s49", 1791*896 + 128)
    srd_off(e, S_H, 56, 57, "s48", 114688 + 28672)
    def unit_loads(u):
        ops = []
        for h in range(2):
            for q in range(4):
                g = []
                if q == 0:
                    if h: g.append(f"s_add_u32 s{sT0}, s{sUD+u}, {32*896}")
                    g += [f"s_add_u32 m0, s{sLB}, {(u % 5)*8192 + 4096*h}", "s_nop 0"]
                g.append(lambda q=q, h=h: e.vmem(f"buffer_load_dwordx4 v{vDM+q}, {s(S_D,4)}, s{sT0 if h else sUD+u} offen offset:{1024*q} lds", ('U', u)))
                ops.append(g)
            for ks in (2*h, 2*h + 1):
                for pb in range(2):
                    ops.append([lambda ks=ks, pb=pb: e.vmem(f"buffer_load_dwordx4 {a(32*u + 8*ks + 4*pb, 4)}, v{vBO+pb}, {s(S_H,4)}, s{sUB+u} offen offset:{1024*ks}", ('U', u))])
        return ops
    from sch import run
    for u in range(cfg.ahead): run(e, unit_loads(u))
    e("v_lshrrev_b32 v3, 5, v2"); e("v_bfe_u32 v1, v2, 2, 2")
    e("v_and_b32 v4, 1, v2"); e("v_lshlrev_b32 v4, 4, v4"); e("v_bfe_u32 v5, v2, 1, 1"); e("v_lshl_add_u32 v4, v5, 3, v4")
    e("v_lshl_add_u32 v5, v3, 3, v1"); e("v_lshl_add_u32 v4, v5, 7, v4")
    e("v_bfe_u32 v5, v2, 4, 1"); e("v_lshl_add_u32 v4, v5, 5, v4"); e(f"v_add_u32 v4, s{sLB}, v4")
    e(f"s_and_b32 s{sT1}, s{sW}, 1")
    e("v_lshrrev_b32 v1, 1, v1"); e(f"v_xor_b32 v1, s{sT1}, v1"); e(f"v_lshl_add_u32 v{vAA}, v1, 6, v4"); e(f"v_xor_b32 v{vAA+1}, 64, v{vAA}")
    e(f"s_add_u32 s48, s{sLB}, 16384"); e(f"v_lshl_add_u32 v{vXW}, v2, 4, s48")
    for t in range(1, 4):
        e(f"s_xor_b32 s48, s{sW}, {t}"); e(f"s_mul_i32 s48, s48, {WREG}"); e(f"s_add_u32 s48, s48, {16384 + 4096*(t-1)}")
        e(f"v_lshl_add_u32 v{vXR+t-1}, v2, 4, s48")
    e("v_and_b32 v4, 1, v2"); e("v_lshlrev_b32 v4, 4, v4"); e("v_bfe_u32 v5, v2, 1, 4"); e("v_add_u32 v4, v4, v5")
    e("v_mul_u32_u24 v4, 896, v4"); e(f"v_lshl_add_u32 v{vOO}, v3, 4, v4")
    e(f"v_lshlrev_b32 v{vGO}, 6, v3")
    e(f"s_lshr_b32 s48, s{sW}, 1"); e("s_lshl1_add_u32 s48, s4, s48"); e("s_mul_i32 s48, s48, 28672")
    e(f"s_lshl1_add_u32 s49, s6, s{sT1}")
    e("s_lshl_b32 s50, s49, 6"); e("s_add_u32 s48, s48, s50")
    srd_off(e, S_O, 54, 55, "s48", 31*896 + 64)
    e(f"s_add_u32 s48, s48, {WS_X1}")
    srd_off(e, S_X, 56, 57, "s48", 31*896 + 64)
    e("s_lshl_b32 s49, s49, 7"); e(f"s_add_u32 s49, s49, {WS_GB}")
    srd_off(e, S_M, 56, 57, "s49", 128)
    tail_loads = [[lambda h=h: e.vmem(f"buffer_load_dwordx4 {v(vX1+4*h,4)}, v{vOO}, {s(S_X,4)}, 0 offen offset:{32*h}", 'X')] for h in range(2)]
    tail_loads += [[lambda h=h, c=c: e.vmem(f"buffer_load_dwordx4 {v(vGB+8*h+4*c,4)}, v{vGO}, {s(S_M,4)}, 0 offen offset:{16*h+32*c}", 'X')] for h in range(2) for c in range(2)]
    tl(e, 1)
    for u in range(7):
        e.wait(vm=[('U', u)])
        if u == 0: tl(e, 2)
        if u == 6: tl(e, 3)
        last = u == 6
        rord = [(ks, nb) for nb in (1, 0) for ks in range(4)] if last else [(ks, nb) for ks in range(4) for nb in range(2)]
        for ks, nb in rord:
            for h in range(2):
                e.ds(f"ds_read_b64_tr_b16 {v(vF + 8*ks + 4*nb + 2*h, 2)}, v{vAA+nb} offset:{(u % 5)*8192 + ks*2048 + h*512}", ('F', ks, nb))
        fill = unit_loads(u + cfg.ahead) if u + cfg.ahead < 7 else (tail_loads if u + cfg.ahead == 7 else [])
        order = [(ks, t) for t in (1, 3, 2, 0) for ks in range(4)] if last else [(ks, t) for ks in range(4) for t in range(4)]
        for m, (ks, t) in enumerate(order):
            e.wait(lg=[('F', ks, t & 1)])
            d = v(vACC + 16*t, 16)
            e(f"{MF} {d}, {v(vF + 8*ks + 4*(t & 1), 4)}, {a(32*u + 8*ks + 4*(t >> 1), 4)}, {d if (u or ks) else 0}")
            if m < len(fill): run(e, fill[m])
            if last and m >= 8:
                tt = (1, 3)[(m - 8) >> 2]; i = m & 3
                if m == 8: e.nop(8)
                e.ds(f"ds_write_b128 v{vXW}, {v(vACC + 16*tt + 4*i, 4)} offset:{4096*(tt-1) + 1024*i}", 'XW')
    e.nop(4)
    for i in range(4): e.ds(f"ds_write_b128 v{vXW}, {v(vACC + 32 + 4*i, 4)} offset:{4096 + 1024*i}", 'XW')
    e.wait(lg_all=True)
    e("s_barrier")
    for i in range(4):
        for t in range(3): e.ds(f"ds_read_b128 {v(vR + 16*t + 4*i, 4)}, v{vXR+t} offset:{1024*i}", ('R', i))
    e.wait(vm=['X'])
    T = vF
    for d in range(8):
        e(f"v_lshlrev_b32 v{T+2*d}, 16, v{vX1+d}"); e(f"v_and_b32 v{T+2*d+1}, 0xffff0000, v{vX1+d}")
    for i in range(4):
        e.wait(lg=[('R', i)])
        for p in (0, 2):
            A = vACC + 4*i + p; R = vR + 4*i + p
            e(f"v_pk_add_f32 {v(A,2)}, {v(A,2)}, {v(R,2)}"); e(f"v_pk_add_f32 {v(R+16,2)}, {v(R+16,2)}, {v(R+32,2)}")
        for p in (0, 2): e(f"v_pk_add_f32 {v(vACC+4*i+p,2)}, {v(vACC+4*i+p,2)}, {v(vR+16+4*i+p,2)}")
        for p in (0, 2): e(f"v_pk_fma_f32 {v(T+4*i+p,2)}, {v(vACC+4*i+p,2)}, {v(vGB+4*i+p,2)}, {v(T+4*i+p,2)}")
        for p in (0, 2): e(f"v_cvt_pk_bf16_f32 v{vX1+2*i+p//2}, v{T+4*i+p}, v{T+4*i+p+1}")
        if i & 1: e(f"buffer_store_dwordx4 {v(vX1+4*(i>>1),4)}, v{vOO}, {s(S_O,4)}, 0 offen offset:{32*(i>>1)}{cfg.sflag}")
    tl_end(e, 4, 56, 57, 4)
    e("K3_END:")
    e("s_endpgm")
    return e
NAME = 'k3_kernel'
DESC = (416, 96, 192)
LAUNCH = f"grid=({GRID},1,1) block=(256,1,1) lds={4*WREG}"
```

```python
from common import *
NMOD = 84
NXH = 64
PF0 = 152
GRID = 256
class Cfg:
    pf_wq = True
    pf_k = True
    pf_v = False
    sec = 64
def gen(cfg=Cfg):
    e = Em()
    e(f"s_cmp_ge_u32 s2, {GRID}")
    e("s_cbranch_scc1 K0_END")
    tl(e, 0)
    e(f"s_cmp_ge_u32 s2, {NMOD + NXH}")
    e("s_cbranch_scc1 K0_PF")
    e(f"s_load_dwordx2 s[4:5], s[0:1], {ARG['x']}")
    e(f"s_load_dwordx4 s[8:11], s[0:1], {ARG['c']}")
    e(f"s_load_dwordx2 s[6:7], s[0:1], {ARG['ws']}")
    e(f"s_cmp_ge_u32 s2, {NMOD}")
    e("s_cbranch_scc1 K0_XHAT")
    e("s_and_b32 s3, s2, 7")
    e("s_lshl_b32 s3, s3, 1")
    e("s_bfe_u32 s12, s2, 0x10003")
    e("s_add_u32 s3, s3, s12")
    e("s_and_b32 s12, s2, 0x70")
    e("s_add_u32 s3, s3, s12")
    e("s_cmp_ge_u32 s2, 80")
    e("s_cselect_b32 s3, s2, s3")
    e("v_lshrrev_b32 v1, 2, v0")
    e("v_and_b32 v2, 3, v0")
    e("s_movk_i32 s12, 5376")
    e("v_mul_lo_u32 v3, v1, s12")
    e("v_lshl_add_u32 v3, v2, 4, v3")
    e("s_lshl_b32 s13, s3, 6")
    e("v_lshlrev_b32 v4, 1, v1")
    e("s_waitcnt lgkmcnt(0)")
    srd(e, 16, 10, 11, 448 * 5376)
    srd(e, 20, 8, 9, 896)
    srd(e, 24, 6, 7, 0x10000)
    for i in range(7):
        if i: e(f"s_add_u32 s13, s13, {64*5376}")
        e.vmem(f"buffer_load_dwordx4 {v(16+4*i,4)}, v3, s[16:19], s13 offen", ('w', i))
    for i in range(7):
        e.vmem(f"buffer_load_short_d16_hi v{8+i}, v4, s[20:23], 0 offen offset:{128*i}", ('c', i))
    e("s_mul_i32 s14, s3, 4682")
    e("s_lshr_b32 s14, s14, 16")
    e("s_mul_i32 s15, s14, 14")
    e("s_sub_u32 s15, s3, s15")
    e.wait(vm=[('c', 6)])
    for i in range(7): e(f"v_and_b32 v{8+i}, 0xffff0000, v{8+i}")
    for i in range(7): e(f"v_mul_f32 v{48+i}, {hex(f2u(-math.log2(math.e)))}, v{8+i}")
    for i in range(7): e(f"v_exp_f32 v{48+i}, v{48+i}")
    for i in range(7): e(f"v_add_f32 v{48+i}, 1.0, v{48+i}")
    for i in range(7): e(f"v_rcp_f32 v{48+i}, v{48+i}")
    for i in range(7): e(f"v_mul_f32 v{8+i}, v{8+i}, v{48+i}")
    for i in range(7): bfround(e, f"v{8+i}", f"v{8+i}")
    for i in range(7):
        for p in range(4):
            w = 16 + 4*i + p
            e(f"v_lshlrev_b32 v56, 16, v{w}")
            e(f"v_and_b32 v57, 0xffff0000, v{w}")
            if i == 0:
                e(f"v_mul_f32 v{48+2*p}, v56, v8")
                e(f"v_mul_f32 v{49+2*p}, v57, v8")
            else:
                e(f"v_fmac_f32 v{48+2*p}, v56, v{8+i}")
                e(f"v_fmac_f32 v{49+2*p}, v57, v{8+i}")
    e("v_lshlrev_b32 v5, 5, v0")
    e("ds_write_b128 v5, v[48:51]")
    e("ds_write_b128 v5, v[52:55] offset:16")
    e("s_waitcnt lgkmcnt(0)")
    e("s_barrier")
    e("v_cmp_gt_u32 vcc, 64, v0")
    e("s_and_saveexec_b64 s[28:29], vcc")
    e("s_cbranch_execz K0_END")
    e("v_and_b32 v1, 31, v0")
    e("v_lshrrev_b32 v2, 5, v0")
    e("v_lshlrev_b32 v5, 2, v1")
    e("v_lshl_add_u32 v5, v2, 12, v5")
    e("v_add_u32 v6, 128, v5")
    for i in range(8):
        e(f"ds_read2st64_b32 {v(16+4*i,2)}, v5 offset0:{2*i} offset1:{2*i+1}")
        e(f"ds_read2st64_b32 {v(18+4*i,2)}, v6 offset0:{2*i} offset1:{2*i+1}")
    e("s_cmp_eq_u32 s14, 1")
    e("s_cselect_b32 s20, 1.0, 0")
    e("s_cmp_eq_u32 s14, 4")
    e("s_cselect_b32 s20, 1.0, s20")
    e("s_cmp_lt_u32 s14, 2")
    e(f"s_cselect_b32 s21, {hex(f2u(C0))}, 1.0")
    e("s_cselect_b32 s22, 64, 32")
    e("s_mov_b32 s23, 32")
    for sec, base in ((1, 0), (2, WS_GA), (3, WS_SB), (4, WS_S2), (5, WS_GB)):
        e(f"s_cmp_eq_u32 s14, {sec}")
        e(f"s_cselect_b32 s23, {base}, s23")
    e("s_lshl_b32 s15, s15, 2")
    e("v_bfe_u32 v7, v1, 2, 2")
    e("v_add_u32 v7, s15, v7")
    e("v_mul_lo_u32 v7, v7, s22")
    e("v_and_b32 v8, 3, v1")
    e("v_lshl_add_u32 v7, v8, 2, v7")
    e("v_and_b32 v8, 16, v1")
    e("v_add_u32 v7, v8, v7")
    e("s_waitcnt lgkmcnt(0)")
    n = 32; base = 16
    while n > 1:
        for i in range(n // 2): e(f"v_add_f32 v{base+i}, v{base+2*i}, v{base+2*i+1}")
        n //= 2
    e("v_mov_b32 v17, v16")
    e("s_nop 1")
    e("v_permlane32_swap_b32 v16, v17")
    e("v_add_f32 v16, v16, v17")
    bfround(e, "v16", "v16")
    e("v_add_f32 v16, s20, v16")
    bfround(e, "v16", "v16")
    e("v_mul_f32 v16, s21, v16")
    e("v_cmp_gt_u32 vcc, 32, v0")
    e("s_and_b64 exec, exec, vcc")
    e("buffer_store_dword v16, v7, s[24:27], s23 offen")
    tl_end(e, 0, 6, 7, 1)
    e("s_endpgm")
    e("K0_XHAT:")
    e(f"s_sub_u32 s3, s2, {NMOD}")
    e("v_lshrrev_b32 v1, 3, v0")
    e("v_and_b32 v2, 3, v0")
    e("v_bfe_u32 v5, v0, 2, 1")
    e("v_mul_u32_u24 v3, 896, v1")
    e("v_lshl_add_u32 v3, v2, 3, v3")
    e("v_lshl_add_u32 v3, v5, 6, v3")
    e(f"s_mul_i32 s13, s3, {32*896}")
    e("v_lshrrev_b32 v4, 4, v1")
    e("v_mul_u32_u24 v4, 14336, v4")
    e("v_lshl_add_u32 v4, v5, 10, v4")
    e("v_lshl_add_u32 v4, v2, 8, v4")
    e("v_and_b32 v6, 15, v1")
    e("v_lshl_add_u32 v4, v6, 4, v4")
    e("s_waitcnt lgkmcnt(0)")
    srd(e, 16, 4, 5, ACT_BYTES)
    srd_off(e, 24, 6, 7, WS_XHAT, ACT_BYTES)
    for i in range(7):
        for u in range(2):
            e.vmem(f"buffer_load_dwordx2 {v(8+4*i+2*u,2)}, v3, s[16:19], s13 offen offset:{128*i+32*u}", ('x', i))
    X = 40
    for i in range(7):
        e.wait(vm=[('x', i)])
        for p in range(4):
            e(f"v_lshlrev_b32 v{X+8*i+2*p}, 16, v{8+4*i+p}")
            e(f"v_and_b32 v{X+8*i+2*p+1}, 0xffff0000, v{8+4*i+p}")
    ln_stats(e, X, 56, 'v5', 'v6', tmp=8)
    for i in range(7):
        for p in range(8): e(f"v_sub_f32 v{X+8*i+p}, v{X+8*i+p}, v5")
        for p in range(8): e(f"v_mul_f32 v{X+8*i+p}, v{X+8*i+p}, v6")
        for p in range(4): e(f"v_cvt_pk_f16_f32 v{8+4*i+p}, v{X+8*i+2*p}, v{X+8*i+2*p+1}")
        if i and i % 2 == 0: e(f"s_add_u32 s13, s13, 4096")
        e(f"buffer_store_dwordx4 {v(8+4*i,4)}, v4, s[24:27], s13 offen offset:{2048*(i&1)}")
    tl_end(e, 0, 6, 7, 1)
    e("s_endpgm")
    e("K0_PF:")
    e(f"s_cmp_lt_u32 s2, {PF0}")
    e("s_cbranch_scc1 K0_END")
    e(f"s_load_dwordx4 s[8:11], s[0:1], {ARG['k']}")
    e(f"s_load_dwordx2 s[12:13], s[0:1], {ARG['wq']}")
    e(f"s_load_dwordx2 s[6:7], s[0:1], {ARG['ws']}")
    NT = (GRID - PF0) // 8 * 256
    sec = cfg.sec; lg = sec.bit_length() - 1
    e(f"s_sub_u32 s3, s2, {PF0}"); e("s_lshr_b32 s3, s3, 3"); e("s_lshl_b32 s3, s3, 8")
    e("v_add_u32 v1, s3, v0")
    e("s_and_b32 s4, s2, 7")
    e("s_lshl_b32 s5, s4, 10"); e("s_lshl_b32 s4, s4, 20")
    spr = 1024 // sec
    e(f"v_lshrrev_b32 v2, {10 - lg}, v1"); e("v_lshlrev_b32 v2, 13, v2"); e(f"v_and_b32 v3, {spr - 1}, v1"); e(f"v_lshl_add_u32 v2, v3, {lg}, v2")
    e(f"v_lshlrev_b32 v1, {lg}, v1")
    e("s_waitcnt lgkmcnt(0)")
    srd_off(e, 16, 12, 13, "s5", 447*8192 + 1024)
    srd_off(e, 20, 8, 9, "s4", 1 << 20)
    srd_off(e, 24, 10, 11, "s4", 1 << 20)
    if cfg.pf_wq:
        for i in range(-(-448*spr // NT)):
            e("buffer_load_dword v4, v2, s[16:19], 0 offen"); e(f"v_add_u32 v2, {NT//spr*8192}, v2")
    for i in range(-(-(1 << 20) // (sec*NT))):
        for on, sr in ((cfg.pf_k, 20), (cfg.pf_v, 24)):
            if on: e(f"buffer_load_dword v4, v1, s[{sr}:{sr+3}], 0 offen")
        e(f"v_add_u32 v1, {NT*sec}, v1")
    tl_end(e, 0, 6, 7, 1)
    e("K0_END:")
    e("s_endpgm")
    return e

def red8(e, r, t):
    e("s_nop 1")
    e(f"v_add_f32_dpp {r}, {r}, {r} quad_perm:[1,0,3,2] row_mask:0xf bank_mask:0xf")
    e("s_nop 1")
    e(f"v_add_f32_dpp {r}, {r}, {r} quad_perm:[2,3,0,1] row_mask:0xf bank_mask:0xf")
    e("s_nop 1")
    e(f"v_add_f32_dpp {r}, {r}, {r} row_half_mirror row_mask:0xf bank_mask:0xf")

def ln_stats(e, X, n, mean, rinv, tmp):
    t = [f"v{tmp+i}" for i in range(4)]
    for i in range(4): e(f"v_add_f32 {t[i]}, v{X+i}, v{X+4+i}")
    for i in range(8, n): e(f"v_add_f32 {t[i%4]}, {t[i%4]}, v{X+i}")
    e(f"v_add_f32 {t[0]}, {t[0]}, {t[1]}"); e(f"v_add_f32 {t[2]}, {t[2]}, {t[3]}")
    e(f"v_add_f32 {mean}, {t[0]}, {t[2]}")
    red8(e, mean, None)
    e(f"v_mul_f32 {mean}, {hex(f2u(1/448))}, {mean}")
    for i in range(n):
        e(f"v_sub_f32 {rinv}, v{X+i}, {mean}")
        if i < 4: e(f"v_mul_f32 {t[i]}, {rinv}, {rinv}")
        else: e(f"v_fmac_f32 {t[i%4]}, {rinv}, {rinv}")
    e(f"v_add_f32 {t[0]}, {t[0]}, {t[1]}"); e(f"v_add_f32 {t[2]}, {t[2]}, {t[3]}")
    e(f"v_add_f32 {rinv}, {t[0]}, {t[2]}")
    red8(e, rinv, None)
    e(f"v_mul_f32 {rinv}, {hex(f2u(1/448))}, {rinv}")
    bfround(e, rinv, rinv)
    e(f"v_add_f32 {rinv}, {hex(f2u(1e-5))}, {rinv}")
    bfround(e, rinv, rinv)
    e(f"v_sqrt_f32 {rinv}, {rinv}")
    e("s_nop 0")
    bfround(e, rinv, rinv)
    e(f"v_rcp_f32 {rinv}, {rinv}")
    bfround(e, mean, mean)
NAME = 'k0_kernel'
DESC = (104, 96, 104)
LAUNCH = f"grid=({GRID},1,1) block=(256,1,1) lds=8192"
```

```python
from common import *
import re
GRID = 256
SLOT = 32768
S_K, S_V, S_WQ, S_WO, S_X, S_P = 8, 12, 16, 20, 24, 28
sW = 3
sWOFF = 32
sKOFF, sVOFF = 33, 34
sKSL = 35
sKD = 36
sKRS = 37
sCNT = 38
sTHR = 39
sT0, sT1, sT2, sT3 = 40, 41, 42, 43
sXOFF = 44
vWADDR = 4
vL, vTS, vT6, vT7 = 4, 5, 6, 7
vWDMA = 8
vKADDR = 8
vKDMA = 16
vVDMA = 24
vXOFF, vMODA = 28, 29
vMOD = 32
vACC = 64
vS = [32, 64]
vP = [96, 112]
vNEGM = 128
vT = 144
vVADDR = 152
vOADDR = 156
vSTO = 158
vX = 192
vQ = 192
aO = 0
aF = 128
NF = 16
MF = "v_mfma_f32_32x32x16_bf16"

class Cfg:
    D = 6
    WG = 2
    CAP = 3
    BARG = 27
    BARL = 3
    stamps = False
    trips = 16
    sm_b = 12
    dump_q = False
    dump_o = False
    thr = 2.0**30
    abl = ()
    pf = True

def frag(i): return a(aF + 4 * (i % NF), 4)
def fragh(i, u): return a(aF + 4 * (i % NF) + 2 * u, 2)

def dma(e, voff, srd_, soff, imm, tag):
    o = f" offset:{imm}" if imm else ""
    e.vmem(f"buffer_load_dwordx4 v{voff}, {s(srd_,4)}, s{soff} offen{o} lds", tag)

def stamp(e, cfg, idx):
    m = {0: 0, 2: 1, 3: 2, 4: 3, 5: 4, 6: 5}
    if idx in m: tl(e, m[idx])
    if cfg.stamps: e(f"s_memtime s[{60+2*idx}:{61+2*idx}]")

def softmax_groups(S, P):
    ops = [[f"v_exp_f32 v{vT + i % 8}, v{S + i}"] for i in range(32)] + [["s_nop 0"]]
    for j in range(32):
        g = ops[j + 1]
        if j == 1: g.append(f"v_add_f32 v{vTS}, v{vT}, v{vT+1}")
        elif j >= 2: g.append(f"v_add_f32 v{vTS}, v{vTS}, v{vT + j % 8}")
        if j % 2 == 1: g.append(f"v_cvt_pk_bf16_f32 v{P + j // 2}, v{vT + (j-1) % 8}, v{vT + j % 8}")
    return ops

def run(e, f):
    if callable(f): f()
    elif isinstance(f, (list, tuple)):
        for x in f: run(e, x)
    else: e(f)

def phase(e, cfg, mf, cur, npre, nxt, fill, bar=None, switch=None, pre=None):
    D, CAP, n = cfg.D, cfg.CAP, len(mf)
    cnt = [0] * n
    items = [(i, t) for i in range(npre, n) for t in cur[i]]
    gaps = []
    g = 0
    for (i, t) in items:
        g = max(g, i - D, 0)
        while cnt[g] >= CAP: g += 1
        cnt[g] += 1; gaps.append(g)
    last = n - 1
    if bar is not None:
        dl = cfg.BARG - cfg.BARL
        cnt = [0] * n
        for k in range(len(items) - 1, -1, -1):
            g = min(gaps[k], dl)
            while cnt[g] >= CAP: g -= 1
            assert g >= 0
            cnt[g] += 1; gaps[k] = g; dl = g
    reads = {}
    for (i, t), g in zip(items, gaps):
        assert g < i and g >= i - NF, (i, g)
        reads.setdefault(g, []).append((t, i))
    lastcur = max(gaps) if gaps else -1
    nreads = {}
    npre_n = 0
    if nxt is not None:
        g = cfg.BARG if bar is not None else lastcur + (1 if switch else 0)
        for i in range(D):
            gi = max(g, n + i - D)
            pl = []
            c2 = list(cnt)
            ok = True
            for t in nxt[i]:
                while gi < n and c2[gi] >= CAP: gi += 1
                if gi >= n: ok = False; break
                c2[gi] += 1; pl.append((gi, t))
            if not ok: break
            cnt = c2; g = gi
            for (gg, t) in pl:
                assert gg >= n + i - NF
                nreads.setdefault(gg, []).append((t, i))
            npre_n = i + 1
    for m in range(n):
        if pre and m in pre: run(e, pre[m])
        if m % cfg.WG == 0:
            e.wait(lg=[('F', k % NF) for k in range(m, min(n, m + cfg.WG))])
        e(mf[m])
        for (t, fi) in reads.get(m, []): e.ds(t, ('F', fi % NF))
        if switch and m == lastcur + 1: run(e, switch)
        if bar is not None and m == cfg.BARG:
            e.wait(vm=bar, lg_all=True)
            e("s_barrier")
        for (t, fi) in nreads.get(m, []): e.ds(t, ('F', fi % NF))
        run(e, fill.get(m, []))
    return npre_n

QK_ORDER = [(kb, t) for t in range(16) for kb in range(2)]
PV_ORDER = [(db, ks) for ks in range(4) for db in range(8)]
def k_reads():
    return [[f"ds_read_b128 {frag(i)}, v{vKADDR + (t & 7)} offset:{kb*16384 + (t >> 3)*256}"] for i, (kb, t) in enumerate(QK_ORDER)]
def v_reads(addr, base, ustep):
    return [[f"ds_read_b64_tr_b16 {fragh(i, u)}, v{addr + (db & 3)} offset:{base + ks*8192 + u*ustep + (db >> 2)*256}" for u in (0, 1)]
            for i, (db, ks) in enumerate(PV_ORDER)]
def qk_mfmas(S, c0):
    return [f"{MF} {v(S + 16*kb, 16)}, {frag(i)}, {v(vQ + 4*t, 4)}, {c0 if t == 0 else v(S + 16*kb, 16)}" for i, (kb, t) in enumerate(QK_ORDER)]
def pv_mfmas(P):
    return [f"{MF} {a(aO + 16*db, 16)}, {frag(i)}, {v(P + 4*ks, 4)}, {a(aO + 16*db, 16)}" for i, (db, ks) in enumerate(PV_ORDER)]

def dma_group(e, m0expr, voffs, srd_, soff, tag):
    ops = []
    for q in range(8):
        g = []
        if q % 4 == 0:
            g.append(m0expr(4096 * (q // 4))); g.append("s_nop 0")
        g.append(lambda q=q: dma(e, voffs[q], srd_, soff, 1024 * (q & 3), tag))
        ops.append(g)
    return ops
def k_dma(e, tag='K'):
    ops = dma_group(e, lambda o: f"s_add_u32 m0, s{sKSL}, {o}", [vKDMA + q for q in range(8)], S_K, sKOFF, tag)
    ops.append([f"s_add_u32 s{sKOFF}, s{sKOFF}, {SLOT}", f"s_and_b32 s{sKOFF}, s{sKOFF}, 0xfffff",
                f"s_add_u32 s{sKSL}, s{sKSL}, {SLOT}", f"s_cmp_ge_u32 s{sKSL}, {3*SLOT}", f"s_cselect_b32 s{sKSL}, s{sWOFF}, s{sKSL}"])
    return ops
def v_dma(e, slot, tag='V'):
    ops = dma_group(e, lambda o: f"s_add_u32 m0, s{sWOFF}, {slot*SLOT + o}", [vVDMA + 2*(q // 4) + (q & 1) for q in range(8)], S_V, sVOFF, tag)
    ops.append([f"s_add_u32 s{sVOFF}, s{sVOFF}, {SLOT}", f"s_and_b32 s{sVOFF}, s{sVOFF}, 0xfffff"])
    return ops
def w_dma(e, slot, tile):
    ops = dma_group(e, lambda o: f"s_add_u32 m0, s{sWOFF}, {slot*SLOT + o}", [vWDMA + q for q in range(8)], S_WQ, sT0, ('W', tile))
    ops[0] = [f"s_mov_b32 s{sT0}, {tile*64*8192}"] + ops[0]
    return ops
def wo_dma(e, slot, tile):
    ops = dma_group(e, lambda o: f"s_add_u32 m0, s{sWOFF}, {slot*SLOT + o}", [vKDMA + q for q in range(8)], S_WO, sT0, ('WO', tile))
    ops[0] = [f"s_mov_b32 s{sT0}, {tile*128}"] + ops[0]
    return ops

def spread(fill, ops, gaps):
    n = len(ops)
    for i, o in enumerate(ops):
        fill.setdefault(gaps[i * len(gaps) // n], []).append(o)

def rowmax(e, S, dst, tmp):
    e(f"v_max3_f32 {dst}, v{S}, v{S+1}, v{S+2}")
    e(f"v_max3_f32 {tmp}, v{S+3}, v{S+4}, v{S+5}")
    i = 6
    while i < 32:
        r = dst if (i // 2) % 2 else tmp
        e(f"v_max3_f32 {r}, {r}, v{S+i}, v{S+i+1}"); i += 2
    e(f"v_max_f32 {dst}, {dst}, {tmp}")
    e(f"v_mov_b32 {tmp}, {dst}")
    e("s_nop 1")
    e(f"v_permlane32_swap_b32 {dst}, {tmp}")
    e(f"v_max_f32 {dst}, {dst}, {tmp}")

def kaddr_adv():
    return [[f"s_add_u32 s{sKRS}, s{sKRS}, 1", f"s_cmp_eq_u32 s{sKRS}, 3", f"s_cselect_b32 s{sKD}, {-2*SLOT & 0xffffffff}, {SLOT}".replace(str(-2*SLOT & 0xffffffff), f"s{sT3}"),
             f"s_cselect_b32 s{sKRS}, 0, s{sKRS}"]] + [f"v_add_u32 v{vKADDR+x}, s{sKD}, v{vKADDR+x}" for x in range(8)]

def gen(cfg=Cfg):
    e = Em()
    e(f"s_cmp_ge_u32 s2, {GRID}")
    e("s_cbranch_scc1 K1_END")
    e(f"s_load_dwordx8 s[48:55], s[0:1], {ARG['k']}")
    e(f"s_load_dwordx2 s[56:57], s[0:1], {ARG['ws']}")
    stamp(e, cfg, 0)
    if cfg.stamps: e("s_memrealtime s[84:85]")
    e("v_lshrrev_b32 v1, 6, v0")
    e("v_and_b32 v2, 63, v0")
    e(f"v_readfirstlane_b32 s{sW}, v1")
    e("s_and_b32 s4, s2, 7")
    e("s_bfe_u32 s5, s2, 0x10003")
    e("s_lshl_b32 s6, s4, 1")
    e("s_add_u32 s5, s5, s6")
    e("s_lshr_b32 s6, s2, 4")
    e("s_lshr_b32 s7, s2, 3")
    e(f"s_lshl_b32 s{sWOFF}, s{sW}, 13")
    e(f"s_lshl_b32 s{sKOFF}, s7, 15")
    e(f"s_mov_b32 s{sVOFF}, s{sKOFF}")
    e(f"s_mov_b32 s{sKSL}, s{sWOFF}")
    e(f"s_mov_b32 s{sTHR}, {hex(f2u(cfg.thr))}")
    e(f"s_mov_b32 s{sKRS}, 0")
    e(f"s_mov_b32 s{sT3}, {hex(-2*SLOT & 0xffffffff)}")
    e("v_lshrrev_b32 v3, 5, v2")
    e("v_and_b32 v30, 31, v2")
    e(f"s_lshl_b32 s{sT0}, s{sW}, 4")
    e(f"v_add_u32 v31, s{sT0}, v3")
    e("v_lshlrev_b32 v1, 2, v3")
    e("v_xor_b32 v1, v30, v1")
    e("v_xor_b32 v29, 8, v1")
    e("v_lshlrev_b32 v1, 4, v1")
    e("v_lshlrev_b32 v29, 4, v29")
    for q in range(8):
        e(f"v_lshl_add_u32 v{vWDMA+q}, v31, 13, {'v29' if q & 1 else 'v1'}")
        c = 2*q*8192 - 1024*(q & 3)
        if c: e(f"v_add_u32 v{vWDMA+q}, {c}, v{vWDMA+q}")
    e(f"v_lshlrev_b32 v{vXOFF}, 4, v2")
    e(f"s_lshl2_add_u32 s{sXOFF}, s6, s{sW}")
    e(f"s_mul_i32 s{sXOFF}, s{sXOFF}, 28672")
    e(f"s_add_u32 s{sXOFF}, s{sXOFF}, {WS_XHAT}")
    e(f"s_lshl_b32 s{sT0}, s5, 9")
    e("s_waitcnt lgkmcnt(0)")
    srd_off(e, S_WQ, 52, 53, f"s{sT0}", 447*8192 + 512)
    srd(e, S_X, 56, 57, WS_XHAT + ACT_BYTES)
    wsl = [4, 3, 1, 4, 3, 1, 4]
    run(e, w_dma(e, wsl[0], 0))
    e(f"s_lshl_b32 s{sT1}, s{sW}, 10")
    e(f"s_add_u32 m0, s{sT1}, {2*SLOT}")
    e("s_nop 0")
    e.vmem(f"buffer_load_dwordx4 v{vXOFF}, {s(S_X,4)}, s{sT1} offen lds", 'M')
    def xload(t):
        if t % 4 == 0 and t: e(f"s_add_u32 s{sXOFF}, s{sXOFF}, 4096")
        e.vmem(f"buffer_load_dwordx4 {v(vX + 4*(t % 16), 4)}, v{vXOFF}, {s(S_X,4)}, s{sXOFF} offen offset:{1024*(t % 4)}", ('X', t))
    for t in range(4): xload(t)
    run(e, w_dma(e, wsl[1], 1))
    for t in range(4, 8): xload(t)
    run(e, w_dma(e, wsl[2], 2))
    for t in range(8, 16): xload(t)
    for h in range(2):
        for o in range(2):
            e(f"v_lshl_add_u32 v{vVDMA+2*h+o}, v31, 9, {'v29' if o else 'v1'}")
            if h: e(f"v_add_u32 v{vVDMA+2*h+o}, 4096, v{vVDMA+2*h+o}")
    e(f"s_lshl_b32 s{sT0}, s4, 20")
    srd_off(e, S_K, 48, 49, f"s{sT0}", 1 << 20)
    srd_off(e, S_V, 50, 51, f"s{sT0}", 1 << 20)
    e("v_xor_b32 v1, v30, v3")
    for q in range(8):
        e(f"v_xor_b32 v29, {2*q}, v1")
        e(f"v_lshlrev_b32 v29, 4, v29")
        e(f"v_lshl_add_u32 v{vKDMA+q}, v31, 9, v29")
        if q >= 4: e(f"v_add_u32 v{vKDMA+q}, 4096, v{vKDMA+q}")
    run(e, k_dma(e, 'K0'))
    e(f"s_mul_i32 s{sT0}, s5, {256*896}")
    srd_off(e, S_WO, 54, 55, f"s{sT0}", 256*896)
    e(f"s_lshl2_add_u32 s{sT0}, s6, s{sW}")
    e(f"s_lshl_b32 s{sT0}, s{sT0}, 6")
    e(f"s_add_u32 s{sT0}, s{sT0}, s5")
    e(f"s_mul_i32 s{sT0}, s{sT0}, 7168")
    e(f"s_add_u32 s{sT0}, s{sT0}, {WS_PART}")
    srd_off(e, S_P, 56, 57, f"s{sT0}", 3*16*7168 + 7168)
    def pchunk(dst, tmp):
        return [f"v_bfe_u32 {dst}, v2, 4, 1", f"v_lshlrev_b32 {dst}, 5, {dst}", f"v_and_b32 {tmp}, 1, v2",
                f"v_lshl_add_u32 {dst}, {tmp}, 4, {dst}", f"v_bfe_u32 {tmp}, v2, 1, 1", f"v_lshl_add_u32 {dst}, {tmp}, 3, {dst}"]
    e("v_bfe_u32 v1, v2, 2, 2")
    run(e, pchunk('v29', 'v31'))
    e("v_lshl_add_u32 v31, v3, 3, v1")
    e("v_lshl_add_u32 v31, v31, 9, v29")
    e(f"v_add_u32 v31, {wsl[0]*SLOT}, v31")
    for x in range(4):
        e(f"v_xor_b32 v{vWADDR+x}, {x}, v1")
        e(f"v_lshl_add_u32 v{vWADDR+x}, v{vWADDR+x}, 6, v31")
    e(f"v_lshlrev_b32 v{vMODA}, 6, v3")
    e(f"v_add_u32 v{vMODA}, {2*SLOT}, v{vMODA}")
    def mod_reads(t):
        b = vMOD + 16 * (t % 2)
        return [(lambda q=q: e.ds(f"ds_read_b128 {v(b + 4*q, 4)}, v{vMODA} offset:{t*128 + 16*q}", ('M', t))) for q in range(4)]
    def h_ops(t):
        b = vMOD + 16 * (t % 2); x = vX + 4 * (t % 16)
        ops = [lambda: e.wait(lg=[('M', t)], vm=[('X', t)])]
        for j in range(8):
            sel = " op_sel:[1,0,0]" if j & 1 else ""
            ops.append(f"v_fma_mix_f32 v{b+8+j}, v{x + j//2}, v{b+j}, v{b+8+j}{sel} op_sel_hi:[1,0,0]")
        for p in range(4): ops.append(f"v_cvt_pk_bf16_f32 v{x+p}, v{b+8+2*p}, v{b+9+2*p}")
        return ops
    stamp(e, cfg, 1)
    e.wait(vm=[('W', 0), 'M'])
    e("s_barrier")
    wr = v_reads(vWADDR, 0, 2048)
    npre = cfg.D
    run(e, mod_reads(0)); run(e, mod_reads(1))
    for i in range(npre):
        for t in wr[i]: e.ds(t, ('F', i))
    run(e, h_ops(0))
    e("s_nop 0")
    stamp(e, cfg, 2)
    for tile in range(7):
        mf = []
        for i, (db, ks) in enumerate(PV_ORDER):
            t = 4*tile + ks
            acc = v(vACC + 16*db, 16)
            mf.append(f"{MF} {acc}, {frag(i)}, {v(vX + 4*(t % 16), 4)}, {0 if t == 0 else acc}")
        fill = {}
        for ks in range(4):
            t = 4*tile + ks; g0 = 8*ks
            if t + 2 < 28: spread(fill, mod_reads(t + 2), [g0, g0+1, g0+2, g0+3])
            if t + 1 < 28: spread(fill, h_ops(t + 1), list(range(g0 + 1, g0 + 7)))
            if 1 <= t <= 12: fill.setdefault(g0 + 7, []).append(lambda t=t: xload(t + 15))
        dg = list(range(1, 25, 3)) + [25]
        if 1 <= tile <= 4: spread(fill, w_dma(e, wsl[tile+2], tile + 2), dg[:8])
        elif tile == 5: spread(fill, v_dma(e, 3, 'V'), dg)
        elif tile == 6: spread(fill, k_dma(e, 'K1'), dg)
        if tile == 5:
            ops = ["v_and_b32 v1, 15, v2", "v_xor_b32 v1, v1, v3", "v_lshlrev_b32 v31, 9, v30"]
            for x in range(8):
                ops.append([f"v_xor_b32 v{vKADDR+x}, {2*x}, v1", f"v_lshl_add_u32 v{vKADDR+x}, v{vKADDR+x}, 4, v31"])
            spread(fill, ops, list(range(8, 30, 2)))
        if tile < 6:
            d = (wsl[tile+1] - wsl[tile]) * SLOT
            sw = [f"v_add_u32 v{vWADDR+x}, {hex(d & 0xffffffff)}, v{vWADDR+x}" for x in range(4)]
            npre = phase(e, cfg, mf, wr, npre, wr, fill, bar=[('W', tile + 1)], switch=sw)
        else:
            npre = phase(e, cfg, mf, wr, npre, k_reads(), fill, bar=['K0'])
    stamp(e, cfg, 3)
    e.nop(6)
    for i in range(64): e(f"v_cvt_pk_bf16_f32 v{vQ+i}, v{vACC+2*i}, v{vACC+2*i+1}")
    if cfg.dump_q:
        e(f"s_lshl2_add_u32 s{sT0}, s2, s{sW}"); e(f"s_lshl_b32 s{sT0}, s{sT0}, 14"); e(f"s_add_u32 s{sT0}, s{sT0}, {WS_DBG}")
        srd_off(e, 80, 56, 57, f"s{sT0}", 16384)
        for t in range(16):
            e(f"s_mov_b32 s{sT0}, {t*1024}")
            e.vmem(f"buffer_store_dwordx4 {v(vQ+4*t,4)}, v{vXOFF}, s[80:83], s{sT0} offen", 'K1')
    e("v_bfe_u32 v1, v2, 2, 2")
    e("v_bfe_u32 v29, v2, 4, 1"); e("v_lshlrev_b32 v29, 5, v29"); e("v_and_b32 v31, 3, v2"); e("v_lshl_add_u32 v29, v31, 3, v29")
    e("v_lshl_add_u32 v31, v3, 2, v1"); e("v_lshl_add_u32 v31, v31, 9, v29"); e(f"v_add_u32 v31, {3*SLOT}, v31")
    for x in range(4):
        e(f"v_xor_b32 v{vVADDR+x}, {x}, v1")
        e(f"v_lshl_add_u32 v{vVADDR+x}, v{vVADDR+x}, 6, v31")
    if cfg.pf:
        e(f"s_load_dwordx4 s[88:91], s[0:1], {ARG['wg']}")
        e(f"s_load_dwordx2 s[92:93], s[0:1], {ARG['wd']}")
        e(f"s_lshl2_add_u32 s{sT0}, s7, s{sW}")
        e(f"s_mul_i32 s{sT0}, s{sT0}, 3584")
        e(f"s_mul_i32 s{sT1}, s4, {512*896}")
        e(f"s_add_u32 s{sT0}, s{sT0}, s{sT1}")
        e("v_lshlrev_b32 v1, 6, v2")
        srd(e, 80, 54, 55, 4096*896)
        e.vmem(f"buffer_load_dword v160, v1, s[80:83], s{sT0} offen", 'PF')
        e(f"s_lshl2_add_u32 s{sT0}, s2, s{sW}")
        e(f"s_mul_i32 s{sT0}, s{sT0}, {25*64}")
        e("v_min_u32 v1, 24*64, v1".replace('24*64', str(24*64)))
        e("s_waitcnt lgkmcnt(0)"); e.lg = []
        for r in (88, 90, 92):
            srd(e, 80, r, r + 1, 448*3584)
            e(f"v_add_u32 v29, s{sT0}, v1")
            e.vmem(f"buffer_load_dword v160, v29, s[80:83], 0 offen", 'PF')
    fill = {}
    spread(fill, k_dma(e, 'K'), dg)
    spread(fill, [f"v_accvgpr_write_b32 a{aO+i}, 0" for i in range(128)], list(range(0, 32)))
    npre = phase(e, cfg, qk_mfmas(vS[0], 0), k_reads(), npre, k_reads(), fill, bar=['K1', 'V'], switch=kaddr_adv())
    e.nop(10)
    rowmax(e, vS[0], f"v{vT6}", f"v{vT7}")
    for i in range(16): e(f"v_sub_f32 v{vNEGM+i}, 0, v{vT6}")
    for i in range(32): e(f"v_sub_f32 v{vS[0]+i}, v{vS[0]+i}, v{vT6}")
    e(f"v_mov_b32 v{vL}, 0")
    run(e, softmax_groups(vS[0], vP[0])[:cfg.sm_b])
    e(f"s_mov_b32 s{sCNT}, {cfg.trips}")
    stamp(e, cfg, 4)
    if cfg.stamps: e("s_memrealtime s[86:87]")
    e(".p2align 6") if False else None
    e("K1_LOOP:")
    e.vm = [t for t in e.vm if t != 'PF']
    st0 = (list(e.lg), list(e.vm), npre)
    loop_start = len(e.lines)
    for p in range(2):
        fill = {}
        spread(fill, softmax_groups(vS[p], vP[p])[cfg.sm_b:], list(range(0, 30)))
        spread(fill, v_dma(e, 3 + (p ^ 1)), dg)
        fill.setdefault(30, []).append(f"v_cmp_lt_f32 vcc, s{sTHR}, v{vTS}")
        fill.setdefault(31, []).extend([f"s_cbranch_vccnz K1_SLOW{p}", f"K1_BACK{p}:", f"v_add_f32 v{vL}, v{vL}, v{vTS}"])
        vr = v_reads(vVADDR, p * SLOT, 4096)
        npre = phase(e, cfg, qk_mfmas(vS[p ^ 1], v(vNEGM, 16)), k_reads(), npre, vr, fill)
        fill = {}
        spread(fill, softmax_groups(vS[p ^ 1], vP[p ^ 1])[:cfg.sm_b], list(range(3, 31)))
        e.vm = [('Kold' if t == 'K' else t) for t in e.vm]
        spread(fill, k_dma(e), dg)
        spread(fill, kaddr_adv(), list(range(2, 20, 2)))
        if p == 1: fill.setdefault(30, []).extend([f"s_sub_u32 s{sCNT}, s{sCNT}, 1", f"s_cmp_lg_u32 s{sCNT}, 0"])
        npre = phase(e, cfg, pv_mfmas(vP[p]), vr, npre, k_reads(), fill, bar=['Kold', 'V'])
    e("s_cbranch_scc1 K1_LOOP")
    loop_end = len(e.lines)
    assert st0 == (list(e.lg), list(e.vm), npre), (st0, e.lg, e.vm, npre)
    if cfg.abl:
        body = e.lines[loop_start:loop_end]
        nb = []
        cnt = 0
        for l in body:
            x = l.strip()
            if 'nosm' in cfg.abl and x.startswith(('v_exp', 'v_add_f32', 'v_cvt_pk', 's_cbranch_vccnz')): continue
            if 'nodma' in cfg.abl and 'lds' in x and x.startswith('buffer_load'): continue
            if x.startswith('ds_read'):
                r = int(re.search(r'a\[(\d+):', x).group(1))
                if 'nolds' in cfg.abl: continue
                if 'halflds' in cfg.abl and ((r - aF) // 4) % 2 == 1: continue
            if x.startswith('s_waitcnt') and 'halflds' in cfg.abl and 'vmcnt' not in x:
                n = int(re.search(r'lgkmcnt\((\d+)\)', x).group(1)); l = f"  s_waitcnt lgkmcnt({n//2})"
            if 'm16' in cfg.abl and x.startswith('v_mfma'):
                m = re.match(r'v_mfma\S+ ([va])\[(\d+):\d+\], (\S+), (\S+), ([va])\[(\d+):\d+\]', x)
                k = cnt % 2; cnt += 1
                for h in range(2):
                    d = int(m.group(2)) + 8*k + 4*h; c = int(m.group(6)) + 8*k + 4*h
                    nb.append(f"  v_mfma_f32_16x16x32_bf16 {m.group(1)}[{d}:{d+3}], {m.group(3)}, {m.group(4)}, {m.group(5)}[{c}:{c+3}]")
                continue
            nb.append(l)
        e.lines[loop_start:loop_end] = nb
        loop_end = len(e.lines)
    stamp(e, cfg, 5)
    if cfg.stamps: e("s_memrealtime s[88:89]")
    e.wait(lg_all=True, vm_all=True)
    e("s_barrier")
    e("v_lshrrev_b32 v1, 3, v2"); e(f"s_lshl_b32 s{sT0}, s{sW}, 6"); e(f"v_add_u32 v1, s{sT0}, v1")
    e(f"s_movk_i32 s{sT1}, 896"); e(f"v_mul_lo_u32 v1, v1, s{sT1}")
    e("v_bfe_u32 v29, v2, 4, 1"); e("v_lshlrev_b32 v29, 2, v29"); e("v_and_b32 v31, 7, v2"); e("v_xor_b32 v29, v29, v31")
    e("v_lshl_add_u32 v1, v29, 4, v1")
    for q in range(8): e(f"v_add_u32 v{vKDMA+q}, {7168*q - 1024*(q & 3)}, v1")
    for t in range(5): run(e, wo_dma(e, t, t))
    run(e, pchunk('v29', 'v31'))
    e("v_bfe_u32 v1, v2, 2, 2"); e("v_lshl_add_u32 v31, v3, 2, v1"); e("v_lshl_add_u32 v31, v31, 7, v29")
    e("v_lshrrev_b32 v1, 1, v1")
    e(f"v_lshl_add_u32 v{vOADDR}, v1, 6, v31"); e("v_xor_b32 v1, 1, v1"); e(f"v_lshl_add_u32 v{vOADDR+1}, v1, 6, v31")
    e("v_lshrrev_b32 v1, 3, v30"); e(f"s_mov_b32 s{sT1}, 114688"); e(f"v_mul_lo_u32 v1, v1, s{sT1}")
    e("v_lshl_add_u32 v1, v3, 7, v1"); e("v_and_b32 v31, 7, v2"); e(f"v_lshl_add_u32 v{vSTO}, v31, 4, v1")
    e(f"v_mov_b32 v{vT6}, v{vL}"); e("s_nop 1"); e(f"v_permlane32_swap_b32 v{vL}, v{vT6}"); e(f"v_add_f32 v{vL}, v{vL}, v{vT6}")
    e(f"v_rcp_f32 v{vL}, v{vL}")
    for i in range(0, 128, 8):
        for j in range(8): e(f"v_accvgpr_read_b32 v{vT+j}, a{aO+i+j}")
        for j in range(8): e(f"v_mul_f32 v{vT+j}, v{vT+j}, v{vL}")
        for j in range(4): e(f"v_cvt_pk_bf16_f32 v{vQ+i//2+j}, v{vT+2*j}, v{vT+2*j+1}")
    if cfg.dump_o:
        e(f"s_lshl2_add_u32 s{sT0}, s2, s{sW}"); e(f"s_lshl_b32 s{sT0}, s{sT0}, 14"); e(f"s_add_u32 s{sT0}, s{sT0}, {WS_DBG + 0x1000000}")
        srd_off(e, 80, 56, 57, f"s{sT0}", 16384)
        for t in range(16):
            e(f"s_mov_b32 s{sT0}, {t*1024}")
            e.vmem(f"buffer_store_dwordx4 {v(vQ+4*t,4)}, v{vXOFF}, s[80:83], s{sT0} offen", 'D')
    stamp(e, cfg, 6)
    O_ORDER = [(nb, ks) for ks in range(16) for nb in range(2)]
    orr = [[f"ds_read_b64_tr_b16 {fragh(i, u)}, v{vOADDR + nb} offset:{ks*2048 + u*1024}" for u in (0, 1)] for i, (nb, ks) in enumerate(O_ORDER)]
    e.wait(vm=[('WO', 0)])
    e("s_barrier")
    npre = cfg.D
    for i in range(npre):
        for t in orr[i]: e.ds(t, ('F', i))
    vOA = [32, 64]; vOUT = 96
    def out_ops(tile):
        A = vOA[tile % 2]; ops = [f"s_mov_b32 s{sT1}, {tile*1024}"]
        for nb in range(2):
            for u in range(2):
                o = vOUT + 8*nb + 4*u
                for p in range(4): ops.append(f"v_cvt_pk_bf16_f32 v{o+p}, v{A+16*nb+8*u+2*p}, v{A+16*nb+8*u+2*p+1}")
                ops.append(lambda o=o, nb=nb, u=u: e.vmem(f"buffer_store_dwordx4 {v(o,4)}, v{vSTO}, {s(S_P,4)}, s{sT1} offen offset:{(4*nb+2*u)*128}", 'ST'))
        return ops
    for tile in range(7):
        A = vOA[tile % 2]
        mf = [f"{MF} {v(A+16*nb,16)}, {frag(i)}, {v(vQ+4*ks,4)}, {0 if ks == 0 else v(A+16*nb,16)}" for i, (nb, ks) in enumerate(O_ORDER)]
        fill = {}
        if tile in (1, 2): spread(fill, wo_dma(e, tile - 1, tile + 4), dg[:8])
        if tile >= 1: spread(fill, out_ops(tile - 1), list(range(4, 26)))
        if tile < 6:
            d = (((tile + 1) % 5) - (tile % 5)) * SLOT
            sw = [f"v_add_u32 v{vOADDR+x}, {hex(d & 0xffffffff)}, v{vOADDR+x}" for x in range(2)]
            npre = phase(e, cfg, mf, orr, npre, orr, fill, bar=[('WO', tile + 1)], switch=sw)
        else:
            phase(e, cfg, mf, orr, npre, None, fill)
    e.nop(12)
    run(e, out_ops(6))
    stamp(e, cfg, 7)
    if cfg.stamps:
        e("s_waitcnt vmcnt(0)")
        e("s_memtime s[76:77]")
        e("s_memrealtime s[78:79]")
        e("s_waitcnt lgkmcnt(0)")
        e(f"s_lshl2_add_u32 s{sT0}, s2, s{sW}"); e(f"s_lshl_b32 s{sT0}, s{sT0}, 7"); e(f"s_add_u32 s{sT0}, s{sT0}, {WS_DBG + 0x2000000}")
        srd_off(e, 80, 56, 57, f"s{sT0}", 128)
        e("v_mov_b32 v1, 0")
        for i, r in enumerate(list(range(60, 80)) + list(range(84, 90))):
            e(f"v_mov_b32 v2, s{r}")
            e(f"buffer_store_dword v2, v1, s[80:83], 0 offen offset:{4*i}")
    tl_end(e, 1, 56, 57, 6)
    e("K1_END:")
    e("s_endpgm")
    main_lines = list(e.lines)
    for p in range(2):
        Sc, Sn = vS[p], vS[p ^ 1]
        e(f"K1_SLOW{p}:")
        e.nop(16)
        rowmax(e, Sc, f"v{vT6}", f"v{vT7}")
        e(f"v_max_f32 v{vT6}, 0, v{vT6}")
        e(f"v_sub_f32 v{vT7}, 0, v{vT6}")
        e(f"v_exp_f32 v{vT7}, v{vT7}")
        for i in range(16): e(f"v_sub_f32 v{vNEGM+i}, v{vNEGM+i}, v{vT6}")
        for i in range(32): e(f"v_sub_f32 v{Sc+i}, v{Sc+i}, v{vT6}")
        for i in range(32): e(f"v_sub_f32 v{Sn+i}, v{Sn+i}, v{vT6}")
        e(f"v_mul_f32 v{vL}, v{vL}, v{vT7}")
        for i in range(0, 128, 8):
            for j in range(8): e(f"v_accvgpr_read_b32 v{vT+j}, a{aO+i+j}")
            for j in range(8): e(f"v_mul_f32 v{vT+j}, v{vT+j}, v{vT7}")
            for j in range(8): e(f"v_accvgpr_write_b32 a{aO+i+j}, v{vT+j}")
        run(e, softmax_groups(Sc, vP[p]))
        e.nop(2)
        e(f"s_branch K1_BACK{p}")
    chk = main_lines[:loop_end] + main_lines[loop_start:]
    errs = check_hazards(chk, 'k1') + check_hazards(e.lines[len(main_lines):], 'k1slow')
    for x in errs[:3]: print('HAZARD', x)
    assert cfg.abl or not errs
    return e
NAME = 'k1_kernel'
DESC = (512, 96, 256)
LAUNCH = f"grid=({GRID},1,1) block=(256,1,1) lds=163840"
```

```python
from common import *
from sch import *
GRID = 256
SLOT = 32768
MF = "v_mfma_f32_16x16x32_bf16"
S_K, S_V, S_WQ, S_WO, S_X, S_P = 8, 12, 16, 20, 24, 28
sW, sWOFF, sCNT = 3, 32, 33
sR = [34, 36]
sT0, sT1, sT2, sT3 = 40, 41, 42, 43
vL, vKA, vVA, vPW, vPR, vDK, vDV, vWA, vSTO, vNEGM, vS, vP, vQ = 4, 8, 16, 32, 33, 34, 38, 42, 46, 48, 64, 96, 128
aWF = 224
sROT, sTHR, sXO = 58, 62, 63
MODB = 57344
aO, aF, aPX = 0, 128, 192
PXB = 4*SLOT
class Cfg:
    tmpl = (0, 1, 2, 3)
    dmacost = 2
    dflag = ''
    qkc = 8
    pvc = True
    kgaps = [98, 98, 102, 102, 106, 106, 110, 110, 130, 130, 134, 134, 138, 138, 142, 142]
    pgaps = [26, 30, 39, 47]
    b128c = 1.5
    pw64 = True
    wgaps = {(0,0): 95, (1,0): 103, (0,1): 114, (1,1): 118, (0,2): 122, (1,2): 126, (0,3): 135, (1,3): 143}
    thr = 2.0**64
    dump_q = False
    dump_o = False
    pf = True
    sflag = ' sc1'
    SM0 = 3
    abl = ()

def frag(f): return a(aF + 4 * f, 4)
def fragh(f, u): return a(aF + 4 * f + 2 * u, 2)
def Sr(kb, qb): return vS + 16 * kb + 4 * qb
def Pr(buf, qb): return vP + 16 * buf + 4 * qb

def k_read(f, slot):
    kb, ks = f >> 3, f & 7
    return f"ds_read_b128 {frag(f)}, v{vKA + ks} offset:{slot*SLOT + kb*8192}"
def v_read(f, u, slot):
    db, o = f >> 1, f & 1
    return f"ds_read_b64_tr_b16 {fragh(f, u)}, v{vVA + 8*o + db} offset:{slot*SLOT + u*8192}"
def qk_idx(m, c):
    kb, r = m >> 5, m & 31
    grp, r = r // (4*c), r % (4*c)
    return kb, grp*c + r % c, r // c
def qk_mf(m, cfg, c0=None):
    kb, ks, qb = qk_idx(m, cfg.qkc)
    d = v(Sr(kb, qb), 4)
    c = d if ks else (v(vNEGM + 4*qb, 4) if c0 is None else c0)
    return f"{MF} {d}, {frag(8*kb + ks)}, {v(vQ + 16*ks + 4*qb, 4)}, {c}"
def pv_mf(m, cfg, buf, zero=False):
    m -= 64
    db = m >> 3
    if cfg.pvc: qb, o = (m >> 1) & 3, m & 1
    else: qb, o = m & 3, (m >> 2) & 1
    d = a(aO + 16*db + 4*qb, 4)
    b = a(aPX + 4*qb, 4) if o else v(Pr(buf, qb), 4)
    return f"{MF} {d}, {frag(2*db + o)}, {b}, {0 if zero and not o else d}"

def dma_items(e, cfg, srd_, par, ldsbase, tag, adv):
    it = []
    if adv:
        it += [(f"s_add_u32 s{sR[par]}, s{sR[par]}, {2*SLOT}", 1, 0), (f"s_and_b32 s{sR[par]}, s{sR[par]}, 0xfffff", 1, 0),
               (f"s_add_u32 s{sR[par]+1}, s{sR[par]}, 4096", 1, 0)]
    for q in range(8):
        if q % 4 == 0: it.append((f"s_add_u32 m0, s{sWOFF}, {ldsbase + 4096*(q//4)}", 1, 0))
        o = f" offset:{1024*(q&3)}" if q & 3 else ""
        it.append((lambda q=q, o=o: e.vmem(f"buffer_load_dwordx4 v{(vDK if srd_ == S_K else vDV) + (q&3)}, {s(srd_,4)}, s{sR[par] + q//4} offen{o}{cfg.dflag} lds", tag), cfg.dmacost, 1 if q % 4 == 0 else 0))
    return it

def sm_ops(i, buf):
    kb, qb, r = i >> 4, (i >> 2) & 3, i & 3
    s_ = Sr(kb, qb) + r
    post = [f"v_add_f32 v{vL+qb}, v{vL+qb}, v{s_}"]
    if r & 1: post.append(f"v_cvt_pk_bf16_f32 v{Pr(buf, qb) + 2*kb + (r >> 1)}, v{s_-1}, v{s_}")
    return f"v_exp_f32 v{s_}, v{s_}", post

def build_iter(e, cfg, p, loop=False):
    S = Sched(128, 2, wrap=True)
    GE, GA, GD, GM = cfg.tmpl
    for j in range(32):
        if j >= cfg.SM0: i, buf, tag = j - cfg.SM0, p ^ 1, 'sma'
        else: i, buf, tag = j + 32 - cfg.SM0, p, 'smb'
        ex, post = sm_ops(i, buf)
        S.put(4*j + GE, ex, 2, tag)
        for o in post: S.put(4*j + GA, o, 1, tag)
        if 8 <= j < 24:
            for h in range(2): S.put(4*j + GD, lambda f=j-8, u=h: e.ds(v_read(f, u, p), ('F', f)), 1, 'vr')
    for f, g in enumerate(cfg.kgaps):
        if g < 128: S.put(g, lambda f=f: e.ds(k_read(f, p), ('F', f)), cfg.b128c, 'kr_next')
        else: S.put(g, lambda f=f: e.ds(k_read(f, p ^ 1), ('F', f)), cfg.b128c, 'kr')
        assert g >= 4*(18 + 2*(f >> 1)) - 1
    for qb, g in enumerate(cfg.pgaps):
        if cfg.pw64: S.put(g, lambda qb=qb: e.ds(f"ds_read2st64_b64 {a(aPX + 4*qb, 4)}, v{vPR} offset0:{2*qb} offset1:{2*qb+1}", 'PX'), cfg.b128c, 'pr')
        else: S.put(g, lambda qb=qb: e.ds(f"ds_read_b128 {a(aPX + 4*qb, 4)}, v{vPR} offset:{1024*qb}", 'PX'), cfg.b128c, 'pr')
    for (kb, qb), g in cfg.wgaps.items():
        assert g > 4*21 + GM and g > 4*(16*kb + 4*qb + 3 + cfg.SM0) + GA and g < 128 + 4*5
        buf, tag = (p ^ 1, 'sma') if g < 128 else (p, 'smb')
        if 'pw' in cfg.abl: continue
        if cfg.pw64: S.put(g, lambda qb=qb, buf=buf, kb=kb: e.ds(f"ds_write_b64 v{vPW}, {v(Pr(buf, qb) + 2*kb, 2)} offset:{1024*qb + 512*kb}", 'PW'), 1.5, tag)
        elif kb: S.put(g, lambda qb=qb, buf=buf: e.ds(f"ds_write_b128 v{vPW}, {v(Pr(buf, qb), 4)} offset:{1024*qb}", 'PW'), 1.5, tag)
    S.put(4*5 + GM, lambda: (e.wait(vm=['V'], lg=['PW']), e("s_barrier")), 2, 'barA')
    S.put(4*21 + GM, lambda: (e.wait(vm=['K'], lg=[('F', 6), ('F', 7)]), e("s_barrier")), 2, 'barB')
    S.waits = {0: [('F', f) for f in range(8)], 32: [('F', f) for f in range(8, 16)], 64: ['PX'] + [('F', f) for f in range(4)],
               80: [('F', f) for f in range(4, 6)], 96: [('F', f) for f in range(8, 12)], 112: [('F', f) for f in range(12, 16)]}
    for m in S.waits: S.reserve(m - 1)
    kn = dma_items(e, cfg, S_K, p ^ 1, (p ^ 1)*SLOT, 'K', True); ko = dma_items(e, cfg, S_K, p, p*SLOT, 'K', True)
    for (items, old, j0, tag) in ((dma_items(e, cfg, S_V, p ^ 1, 2*SLOT + (p ^ 1)*SLOT, 'V', False), None, 6, 'vdma'), (kn, ko, 22, 'kdma')):
        j = j0; salu = []
        for n_, (op, c, d) in enumerate(items):
            if isinstance(op, str): salu.append(op); continue
            g = 4*j + GM
            for o in salu:
                if 'm0' in o or '4096' in o: lo = 4*(j - 2) + GM + 1
                else: lo = max(4*13, getattr(S, 'lo2', 0))
                gg = S.place(o, 1, lo, g - 1, lo, tag); assert gg < 128
                S.lo2 = gg
            salu = []
            if j >= 32: S.put(g, old[n_][0], c, 'kdma_b')
            else: S.put(g, op, c, tag)
            j += 2
    if loop:
        g = S.place(f"s_sub_u32 s{sCNT}, s{sCNT}, 1", 1, 100, 126, 110, 'loop'); S.place(f"s_cmp_lg_u32 s{sCNT}, 0", 1, 124, 126, 124, 'loop')
        S.reserve(127)
    return S


def emit_iter(e, cfg, p, skip=(), zero=False, loop=False, extra=None, m0=0):
    S = build_iter(e, cfg, p, loop)
    for m in range(m0, 128):
        if m in S.waits: e.wait(lg=S.waits[m])
        e(qk_mf(m, cfg) if m < 64 else pv_mf(m, cfg, p, zero))
        for op, tag, gg in S.gap(m):
            if tag in skip or tag in cfg.abl: continue
            run(e, op)
        if extra: run(e, extra.get(m, []))
    return S

def flat(e, items):
    for op, c, d in items:
        if d: e("s_nop 0")
        run(e, op)

def loop_addr_ops(cfg):
    o = []
    t0, t1 = 'v47', 'v52'
    o += ["v_lshrrev_b32 v1, 5, v2", "v_and_b32 v3, 31, v2", f"v_lshlrev_b32 {t0}, 1, v1", f"v_xor_b32 {t1}, v3, {t0}", "v_xor_b32 v3, v3, v1"]
    for q in range(4):
        o += [f"v_xor_b32 {t0}, {4*q}, v3", f"v_lshlrev_b32 {t0}, 4, {t0}", f"v_lshl_add_u32 v{vDK+q}, v1, 9, {t0}"]
        o += [f"v_xor_b32 {t0}, {4*q}, {t1}", f"v_lshlrev_b32 {t0}, 4, {t0}", f"v_lshl_add_u32 v{vDV+q}, v1, 9, {t0}"]
    o += [f"s_and_b32 s{sT2}, s{sW}, 1", f"s_mul_i32 s{sT2}, s{sT2}, {16384+256}"]
    o += ["v_and_b32 v1, 15, v2", "v_lshlrev_b32 v1, 9, v1", f"v_add_u32 v1, s{sT2}, v1",
          "v_and_b32 v3, 6, v2", "v_lshlrev_b32 v3, 1, v3", f"v_and_b32 {t0}, 1, v2", f"v_or_b32 v3, v3, {t0}",
          f"v_bfe_u32 {t0}, v2, 4, 1", f"v_lshlrev_b32 {t0}, 1, {t0}", f"v_xor_b32 v3, v3, {t0}",
          f"v_lshrrev_b32 {t0}, 5, v2", f"v_xor_b32 v3, v3, {t0}"]
    for x in range(4):
        o += [f"v_xor_b32 {t0}, {4*x}, v3", f"v_lshl_add_u32 v{vKA+x}, {t0}, 4, v1", f"v_xor_b32 v{vKA+4+x}, 0x100, v{vKA+x}"]
    o += [f"v_lshrrev_b32 {t1}, 2, v2", f"v_lshlrev_b32 v1, 9, {t1}", f"v_add_u32 v1, s{sT2}, v1", f"v_add_u32 v1, {2*SLOT}, v1",
          f"v_and_b32 {t0}, 1, v2", f"v_lshl_add_u32 v1, {t0}, 3, v1",
          f"v_and_b32 v3, 7, {t1}", "v_lshlrev_b32 v3, 1, v3", f"v_bfe_u32 {t0}, v2, 1, 1", f"v_xor_b32 v3, v3, {t0}"]
    for y in range(8):
        o += [f"v_xor_b32 {t0}, {2*y}, v3", f"v_lshl_add_u32 v{vVA+y}, {t0}, 4, v1", f"v_xor_b32 v{vVA+8+y}, 0x4000, v{vVA+y}"]
    o += [f"s_lshl_b32 s{sT2}, s{sW}, 12", f"s_add_u32 s{sT2}, s{sT2}, {PXB}",
          f"v_lshlrev_b32 v{vPW}, 3, v2", f"v_add_u32 v{vPW}, s{sT2}, v{vPW}", f"v_xor_b32 v{vPR}, 0x1000, v{vPW}"]
    return o

def wfrag(n): return a(aWF + 4 * (n % 8), 4)
def wfragh(n, u): return a(aWF + 4 * (n % 8) + 2 * u, 2)

def unit_dma(e, voff, srd_, soff_ops, ldsbase, tag):
    it = []
    for q in range(8):
        if q % 4 == 0:
            it.append((soff_ops(q // 4), 1, 0)); it.append((f"s_add_u32 m0, s{sWOFF}, {ldsbase + 4096*(q//4)}", 1, 0))
        o = f" offset:{1024*(q&3)}" if q & 3 else ""
        it.append((lambda q=q, o=o: e.vmem(f"buffer_load_dwordx4 v{voff + (q&3)}, {s(srd_,4)}, s{sT0} offen{o} lds", tag), 2, 1 if q % 4 == 0 else 0))
    return it

class Gemm:
    def __init__(self, e, per, lead=2):
        self.e, self.per, self.lead = e, per, lead
        self.S = Sched(8 * len(per), 2)
        for n in range(len(per)):
            if n: self.S.reserve(8*n - 1)
            if n + lead < len(per):
                self.S.put(8*n, lambda n=n: self.reads(n + lead, 0), 2); self.S.put(8*n + 2, lambda n=n: self.reads(n + lead, 1), 2)
    def reads(self, n, ks):
        e, P = self.e, self.per[n]
        if ks == 0: run(e, P.get('rpre', []))
        for u in range(2):
            e.ds(f"ds_read_b64_tr_b16 {wfragh(2*n + ks, u)}, v{vWA + P['cb']} offset:{P['base'] + ks*4096 + u*2048}", ('W', n))
    def chain(self, items, lo, hi, step=None):
        return self.S.chain(items, lo, hi)
    def emit(self):
        e = self.e
        for n in range(min(self.lead, len(self.per))):
            self.reads(n, 0); self.reads(n, 1)
        for n, P in enumerate(self.per):
            e.wait(lg=[('W', n)] + P.get('lg', []), vm=P.get('vm', []))
            for i in range(8):
                qb, ks = i >> 1, i & 1
                d = P['acc'](qb)
                e(f"{MF} {d}, {wfrag(2*n + ks)}, {P['b'](ks, qb)}, {0 if P['first'] and not ks else d}")
                for op, tag, gg in self.S.gap(8*n + i): run(e, op)

def xrow(e, regs, op, tmp):
    for sw in ('v_permlane16_swap_b32', 'v_permlane32_swap_b32'):
        for i, r in enumerate(regs): e(f"v_mov_b32 v{tmp+i}, v{r}")
        if len(regs) < 3: e("s_nop 1")
        for i, r in enumerate(regs): e(f"{sw} v{r}, v{tmp+i}")
        for i, r in enumerate(regs): e(f"{op} v{r}, v{r}, v{tmp+i}")

def tile_offs(e):
    e(f"s_lshl_b32 s{sR[0]}, s6, 15"); e(f"s_add_u32 s{sR[0]}, s{sR[0]}, s{sWOFF}"); e(f"s_add_u32 s{sR[0]+1}, s{sR[0]}, 4096")
    e(f"s_add_u32 s{sR[1]}, s{sR[0]}, {SLOT}"); e(f"s_and_b32 s{sR[1]}, s{sR[1]}, 0xfffff"); e(f"s_add_u32 s{sR[1]+1}, s{sR[1]}, 4096")

def dump(e, base, n, off):
    e(f"s_lshl2_add_u32 s{sT0}, s2, s{sW}"); e(f"s_lshl_b32 s{sT0}, s{sT0}, 15"); e(f"s_add_u32 s{sT0}, s{sT0}, {off}")
    srd_off(e, 80, 56, 57, f"s{sT0}", 32768)
    e("v_lshlrev_b32 v1, 4, v2")
    for t in range(n):
        e(f"s_mov_b32 s{sT0}, {t*1024}")
        e(f"buffer_store_dwordx4 {v(base+4*t,4)}, v1, s[80:83], s{sT0} offen")
    e("s_waitcnt vmcnt(0)"); e.vm = []

def gen(cfg=Cfg):
    e = Em()
    e(f"s_cmp_ge_u32 s2, {GRID}")
    e("s_cbranch_scc1 K1_END")
    tl(e, 0)
    e(f"s_load_dwordx2 s[56:57], s[0:1], {ARG['ws']}")
    e(f"s_load_dwordx8 s[48:55], s[0:1], {ARG['k']}")
    e("v_lshrrev_b32 v1, 6, v0"); e("v_and_b32 v2, 63, v0")
    e("s_and_b32 s4, s2, 7"); e("s_lshr_b32 s6, s2, 3")
    e(f"v_readfirstlane_b32 s{sW}, v1")
    vX, vM, vWD, vHW, vHR, vMA = 64, 128, 48, 53, 54, 55
    e(f"v_lshlrev_b32 v{vHR}, 4, v2")
    e(f"v_lshlrev_b32 v{vHW}, 4, v0")
    e(f"s_lshl_b32 s{sWOFF}, s{sW}, 13")
    e(f"s_lshl2_add_u32 s{sXO}, s6, s{sW}"); e(f"s_mul_i32 s{sXO}, s{sXO}, 14336"); e(f"s_add_u32 s{sXO}, s{sXO}, {WS_XHAT}")
    e(f"s_lshl_b32 s{sT1}, s{sW}, 10"); e(f"s_add_u32 m0, s{sT1}, {MODB}")
    e("v_lshrrev_b32 v1, 3, v2"); e("v_and_b32 v3, 6, v1"); e("v_and_b32 v47, 7, v2"); e("v_xor_b32 v3, v3, v47")
    e("v_lshlrev_b32 v47, 4, v3")
    e(f"v_lshl_add_u32 v{vWD}, v1, 13, v47")
    for q in range(1, 4): e(f"v_add_u32 v{vWD+q}, {q*(65536-1024)}, v{vWD}")
    e(f"s_lshl2_add_u32 s{sT2}, s4, s{sW}"); e(f"s_lshl_b32 s{sT2}, s{sT2}, 8")
    e("s_waitcnt lgkmcnt(0)")
    srd(e, S_X, 56, 57, WS_XHAT + ACT_BYTES)
    e.vmem(f"buffer_load_dwordx4 v{vHR}, {s(S_X,4)}, s{sT1} offen lds", 'M')
    for t in range(14):
        if t % 4 == 0 and t: e(f"s_add_u32 s{sXO}, s{sXO}, 4096")
        e.vmem(f"buffer_load_dwordx4 {v(vX + 4*t, 4)}, v{vHR}, {s(S_X,4)}, s{sXO} offen offset:{1024*(t % 4)}", ('X', t))
    srd_off(e, S_WQ, 52, 53, f"s{sT2}", 447*8192 + 256)
    def wq_dma(U):
        return unit_dma(e, vWD, S_WQ, lambda h: f"s_mov_b32 s{sT0}, {(U >> 1)*524288 + (U & 1)*128 + h*262144}", (2 + U % 3)*SLOT, ('WU', U))
    flat(e, wq_dma(0))
    e("v_lshrrev_b32 v1, 2, v2"); e("v_and_b32 v3, 3, v2"); e("v_lshlrev_b32 v3, 3, v3"); e("v_lshl_add_u32 v3, v1, 7, v3")
    e(f"v_add_u32 v3, s{sWOFF}, v3"); e(f"v_add_u32 v3, {2*SLOT}, v3"); e("v_bfe_u32 v1, v2, 3, 2")
    for c in range(4): e(f"v_xor_b32 v47, {c}, v1"); e(f"v_lshl_add_u32 v{vWA+c}, v47, 5, v3")
    e(f"v_lshrrev_b32 v{vMA}, 4, v2"); e(f"v_lshlrev_b32 v{vMA}, 6, v{vMA}"); e(f"v_add_u32 v{vMA}, {MODB}, v{vMA}")
    e(f"s_lshl_b32 s{sT2}, s4, 20")
    srd_off(e, S_K, 48, 49, f"s{sT2}", 1 << 20)
    srd_off(e, S_V, 50, 51, f"s{sT2}", 1 << 20)
    tile_offs(e)
    e(f"s_mov_b32 s{sTHR}, {hex(f2u(cfg.thr))}")
    run(e, loop_addr_ops(cfg))
    for i in range(4): e(f"v_mov_b32 v{vL+i}, 0xff800000")
    e.wait(vm=['M'])
    e("s_barrier")
    tl(e, 1)
    def mreads(t):
        for q in range(4): e.ds(f"ds_read_b128 {v(vM + 16*(t % 2) + 4*q, 4)}, v{vMA} offset:{t*256 + 16*q}", ('M', t))
    mreads(0)
    pend = wq_dma(1) + wq_dma(2)
    for t in range(14):
        if t + 1 < 14: mreads(t + 1)
        e.wait(lg=[('M', t)], vm=[('X', t)])
        b, x = vM + 16*(t % 2), vX + 4*t
        for j in range(8):
            sel = " op_sel:[1,0,0]" if j & 1 else ""
            e(f"v_fma_mix_f32 v{b+8+j}, v{x + j//2}, v{b+j}, v{b+8+j}{sel} op_sel_hi:[1,0,0]")
        for p_ in range(4): e(f"v_cvt_pk_bf16_f32 v{x+p_}, v{b+8+2*p_}, v{b+9+2*p_}")
        e.ds(f"ds_write_b128 v{vHW}, {v(x, 4)} offset:{t*4096}", 'HW')
        k = 2 if t < 12 else 0
        flat(e, pend[:k]); pend = pend[k:]
    flat(e, pend)
    e.wait(lg_all=True)
    e("s_barrier")
    tl(e, 2)
    def hread(n): e.ds(f"ds_read_b128 {a(4*n, 4)}, v{vHR} offset:{1024*n}", ('H', n >> 3))
    for n in range(8): hread(n)
    per = []
    for U in range(14):
        kp, ch = U >> 1, U & 1
        for cb in range(4):
            cbg = 4*ch + cb
            d = dict(cb=cb, base=(U % 3)*SLOT, first=(kp == 0),
                     acc=lambda qb, cbg=cbg: v(vQ + (((cbg >> 1)*4 + qb)*2 + (cbg & 1))*4, 4),
                     b=lambda ks, qb, kp=kp: a(4*((2*kp + ks)*4 + qb), 4))
            if cb == 0:
                d['rpre'] = [lambda U=U: e.wait(vm=[('WU', U)])]
                d['lg'] = [('H', kp)]
            per.append(d)
    G = Gemm(e, per)
    for n, d in enumerate(per):
        U = n >> 2
        if U % 3 == 2: d['base'] = SLOT
        if n & 3 == 0 and U % 3 == 2: d['rpre'] = d['rpre'] + [f"v_add_u32 v{vWA+c}, {SLOT}, v{vWA+c}" for c in range(4)]
        if n & 3 == 0 and U % 3 == 0 and U: d['rpre'] = d['rpre'] + [f"v_subrev_u32 v{vWA+c}, {SLOT}, v{vWA+c}" for c in range(4)]
    for U in range(3, 14):
        G.chain(wq_dma(U), 32*(U - 3) + 25, 32*(U - 2) + 24)
    G.chain([(lambda n=n: hread(n), 1, 0) for n in range(8, 56)], 1, 32*4 - 1)
    G.S.put(32*4 + 12, lambda: (e.wait(lg=[('H', 6)]), e("s_barrier")), 2)
    G.chain(dma_items(e, cfg, S_K, 0, 0, 'K0', False), 377, 400)
    G.chain(dma_items(e, cfg, S_K, 1, SLOT, 'K1', False), 401, 423)
    G.chain(dma_items(e, cfg, S_V, 0, 2*SLOT, 'V', False), 424, 446)
    print('qproj', G.S.report())
    G.emit()
    tl(e, 3)
    vQW, vQR = 48, 49
    e(f"v_add_u32 v{vQW}, s{sWOFF}, v{vHR}"); e(f"v_add_u32 v{vQW}, {3*SLOT}, v{vQW}"); e(f"v_xor_b32 v{vQR}, 0x2000, v{vQW}")
    for n0 in range(0, 16, 2):
        if n0 == 12: e("s_nop 0")
        for n in (n0, n0 + 1):
            for p_ in range(4): e(f"v_cvt_pk_bf16_f32 v{vQ+4*n+p_}, v{vQ+8*n+2*p_}, v{vQ+8*n+2*p_+1}")
        if n0:
            for n in (n0 - 2, n0 - 1): e.ds(f"ds_write_b128 v{vQW}, {v(vQ+4*n,4)} offset:{(n >> 3)*SLOT + (n & 7)*1024}", 'QW')
        else: e("s_nop 1")
        for n in (n0, n0 + 1):
            for p_ in range(2): e(f"v_permlane16_swap_b32 v{vQ+4*n+p_}, v{vQ+4*n+2+p_}")
    for n in (14, 15): e.ds(f"ds_write_b128 v{vQW}, {v(vQ+4*n,4)} offset:{(n >> 3)*SLOT + (n & 7)*1024}", 'QW')
    e.wait(lg_all=True, vm=['K0'])
    e("s_barrier")
    for f in (0, 1, 2, 3): e.ds(k_read(f, 0), ('F', f))
    for n in range(16): e.ds(f"ds_read_b128 {v(vQ+64+4*n,4)}, v{vQR} offset:{(n >> 3)*SLOT + (n & 7)*1024}", 'QR')
    if cfg.dump_q:
        e.wait(lg_all=True); sv = list(e.vm); dump(e, vQ, 32, WS_DBG); e.vm = sv
    e("s_branch K1_QK0")
    e("K1_RST:")
    for f in (0, 1, 2, 3): e(k_read(f, 0))
    e("s_waitcnt lgkmcnt(0)")
    e("K1_QK0:")
    order = [(kb, 4*hf + k, qb) for hf in range(2) for kb in range(2) for qb in range(4) for k in range(4)]
    rd = [8, 9, 10, 11, 4, 5, 6, 7, 12, 13, 14, 15]
    for m, (kb, ks, qb) in enumerate(order):
        if m % 16 == 0: e.wait(lg=[('F', 8*kb + ks + k) for k in range(4)] + (['QR'] if m == 32 else []))
        d = v(Sr(kb, qb), 4)
        e(f"{MF} {d}, {frag(8*kb + ks)}, {v(vQ + 16*ks + 4*qb, 4)}, {d if ks else 0}")
        if m < 12: e.ds(k_read(rd[m], 0), ('F', rd[m]))
    e.nop(4)
    T = vP
    for qb in range(4):
        a_, b_ = Sr(0, qb), Sr(1, qb)
        e(f"v_max3_f32 v{vL+qb}, v{vL+qb}, v{a_}, v{a_+1}"); e(f"v_max3_f32 v{vL+qb}, v{vL+qb}, v{a_+2}, v{a_+3}")
    for qb in range(4):
        b_ = Sr(1, qb)
        e(f"v_max3_f32 v{vL+qb}, v{vL+qb}, v{b_}, v{b_+1}"); e(f"v_max3_f32 v{vL+qb}, v{vL+qb}, v{b_+2}, v{b_+3}")
    xrow(e, [vL+i for i in range(4)], 'v_max_f32', T)
    e(f"v_lshlrev_b32 v1, 4, v2"); e(f"v_add_u32 v1, s{sWOFF}, v1"); e(f"v_add_u32 v1, {3*SLOT}, v1"); e("v_xor_b32 v3, 0x2000, v1")
    e.ds(f"ds_write_b128 v3, {v(vL,4)}", 'X')
    e.wait(lg_all=True, vm=['K1'])
    e("s_barrier")
    e.ds(f"ds_read_b128 {v(T,4)}, v1", 'X')
    S1 = build_iter(e, cfg, 1)
    pre = [(op, tag) for g in range(128) for op, tag, gg in S1.gap(g)]
    for op, tag in pre:
        if tag == 'kr_next': run(e, op)
    e.wait(lg=['X'])
    for qb in range(4): e(f"v_max_f32 v{T+qb}, v{T+qb}, v{vL+qb}")
    for i in range(32): e(f"v_sub_f32 v{vS+i}, v{vS+i}, v{T + ((i >> 2) & 3)}")
    for i in range(16): e(f"v_sub_f32 v{vNEGM+i}, 0, v{T + (i >> 2)}")
    for i in range(4): e(f"v_mov_b32 v{vL+i}, 0")
    sma = [op for op, tag in pre if tag == 'sma']
    kd = [op for op, tag in pre if tag == 'kdma']
    ex = [op for op in sma if isinstance(op, str) and op.startswith('v_exp')]
    for i, op in enumerate(ex):
        e(op)
        if i % 2 == 0 and kd: run(e, kd.pop(0))
    assert not kd
    e("s_nop 0")
    for op in sma:
        if op not in ex: run(e, op)
    if cfg.pf:
        e(f"s_load_dwordx4 s[88:91], s[0:1], {ARG['wg']}")
        e(f"s_load_dwordx2 s[92:93], s[0:1], {ARG['wd']}")
    e.wait(lg_all=True)
    sv = (list(e.lines), list(e.vm)); emit_iter(e, cfg, 1); e.lines, e.vm = sv
    tl(e, 4)
    extra = {}
    if cfg.pf:
        ops = [f"s_lshl2_add_u32 s{sT0}, s6, s{sW}", f"s_mul_i32 s{sT0}, s{sT0}, 3584", f"s_mul_i32 s{sT1}, s4, {512*896}", f"s_add_u32 s{sT0}, s{sT0}, s{sT1}",
               ["v_lshlrev_b32 v1, 6, v2", f"v_min_u32 v1, {55*64}, v1"], lambda: srd(e, 80, 54, 55, 4096*896),
               lambda: e.vmem(f"buffer_load_dword v47, v1, s[80:83], s{sT0} offen", 'V'),
               f"s_lshl2_add_u32 s{sT0}, s2, s{sW}", f"s_mul_i32 s{sT0}, s{sT0}, {25*64}", f"v_min_u32 v1, {24*64}, v1", f"v_add_u32 v1, s{sT0}, v1"]
        for r in (88, 90, 92):
            ops += [lambda r=r: srd(e, 80, r, r + 1, 448*3584), lambda: e.vmem(f"buffer_load_dword v47, v1, s[80:83], 0 offen", 'V')]
        for i, o in enumerate(ops): extra[25 + 2*i] = [o]
    emit_iter(e, cfg, 0, zero=True, extra=extra)
    while e.vm.count('V') > 8: e.vm.remove('V')
    NTRIP = 14
    e(f"s_mov_b32 s{sCNT}, {NTRIP}")
    e(".p2align 3")
    e("K1_LOOP:")
    st0 = (list(e.lg), list(e.vm))
    l0 = len(e.lines)
    emit_iter(e, cfg, 1)
    S = emit_iter(e, cfg, 0, loop=True)
    print('iter', S.report())
    e("s_cbranch_scc1 K1_LOOP")
    l1 = len(e.lines)
    assert st0 == (list(e.lg), list(e.vm)), (st0, e.lg, e.vm)
    vOA, vOB = vDK, vKA
    RSL = [0, SLOT, 4*SLOT]
    def wo_dma(U):
        ps, i = U >> 3, U & 7
        return unit_dma(e, vOB if ps else vOA, S_WO, lambda h: f"s_add_u32 s{sT0}, s{sROT + (i >> 1)}, {((i & 1)*64 + h*32)*896}", RSL[U % 3], ('WU', U))
    def spread(extra, items, gaps):
        gi = 0; ops = []
        for op, c, d in items:
            if isinstance(op, str): extra.setdefault(gaps[gi] - 2, []).append(op)
            else: extra.setdefault(gaps[gi], []).append(op); gi += 1
    setup = [f"s_mul_i32 s{sT1}, s4, {512*896}", lambda: srd_off(e, S_WO, 54, 55, f"s{sT1}", 512*896)]
    for j in range(4): setup += [[f"s_add_u32 s{sT1}, s{sW}, {j}", f"s_and_b32 s{sT1}, s{sT1}, 3"], f"s_mul_i32 s{sROT+j}, s{sT1}, {128*896}"]
    setup += ["v_lshrrev_b32 v1, 3, v2", "v_and_b32 v3, 6, v1", "v_and_b32 v47, 7, v2", "v_xor_b32 v3, v3, v47", "v_mul_u32_u24 v1, 896, v1",
              "v_lshl_add_u32 v1, v3, 4, v1", f"s_lshl_b32 s{sT1}, s{sW}, 7", f"v_add_u32 v{vOA}, s{sT1}, v1"]
    setup += [f"v_add_u32 v{vOA+q}, {q*(7168-1024)}, v{vOA}" for q in range(1, 4)]
    extra = {}
    for i, o in enumerate(setup): extra[21 + 2*i + (0 if (21 + 2*i) % 4 == 1 else 0)] = [o]
    assert 21 + 2*len(setup) < 88
    spread(extra, wo_dma(0), list(range(91, 128, 4))[:8])
    emit_iter(e, cfg, 1, skip=('kdma',), extra=extra)
    extra = {}
    setupB = [f"s_mul_i32 s{sT1}, s{sW}, 96", f"s_add_u32 s{sT1}, s{sT1}, 512", "v_cmp_gt_u32 vcc, 6, v3", f"v_add_u32 v1, s{sT1}, v1", "v_mov_b32 v47, 0x7fff0000",
              f"v_cndmask_b32 v{vOB}, v47, v1, vcc"] + [f"v_add_u32 v{vOB+q}, {q*(7168-1024)}, v{vOB}" for q in range(1, 4)]
    vGR = vKA + 4
    for j in range(4):
        setupB += [[f"s_add_u32 s{sT1}, s{sW}, {j}", f"s_and_b32 s{sT1}, s{sT1}, 3"], [f"s_lshl_b32 s{sT1}, s{sT1}, 13", f"s_add_u32 s{sT1}, s{sT1}, {2*SLOT}"],
                   f"v_lshl_add_u32 v{vGR+j}, v2, 4, s{sT1}"]
    setupB += [f"v_subrev_u32 v{vWA+c}, {2*SLOT}, v{vWA+c}" for c in range(4)]
    setupB += [[f"s_lshl_b32 s{sT1}, s6, 6", f"s_add_u32 s{sT1}, s{sT1}, s4"], [f"s_mul_i32 s{sT1}, s{sT1}, 7168", f"s_add_u32 s{sT1}, s{sT1}, {WS_PART}"],
               lambda: srd_off(e, S_P, 56, 57, f"s{sT1}", 7*57344 + 7168),
               "v_bfe_u32 v1, v2, 2, 2", "v_mul_u32_u24 v1, 57344, v1", "v_lshrrev_b32 v3, 4, v2", "v_lshl_add_u32 v1, v3, 6, v1",
               "v_and_b32 v3, 3, v2", f"v_lshl_add_u32 v{vSTO}, v3, 4, v1"]
    for i, o in enumerate(setupB): extra[19 + 2*i] = [o]
    assert 19 + 2*len(setupB) < 90, len(setupB)
    spread(extra, wo_dma(1), list(range(91, 128, 4))[:8])
    emit_iter(e, cfg, 0, skip=('kdma', 'kdma_b', 'kr_next'), extra=extra)
    tl(e, 5)
    S1 = build_iter(e, cfg, 1)
    pre = [(op, tag, g) for g in range(64) for op, tag, gg in S1.gap(g)]
    smb = [op for op, tag, g in pre if tag == 'smb']
    ex = [op for op in smb if isinstance(op, str) and op.startswith('v_exp')]
    run(e, ex); e("s_nop 0"); run(e, [op for op in smb if op not in ex])
    T = vS
    xrow(e, [vL+i for i in range(4)], 'v_add_f32', T)
    e("v_lshlrev_b32 v1, 4, v0"); e(f"v_add_u32 v1, {PXB + 16384}, v1"); e("v_xor_b32 v3, 0x400, v1"); e("v_xor_b32 v47, 0x800, v1")
    e.ds(f"ds_write_b128 v1, {v(vL,4)}", 'X')
    e("v_xor_b32 v1, 0xc00, v1")
    e.wait(lg_all=True, vm=['V'])
    e("s_barrier")
    for op, tag, g in pre:
        if tag == 'pr': run(e, op)
    vr = [op for op, tag, g in pre if tag == 'vr']
    run(e, vr[:4])
    e.ds(f"ds_read_b128 {v(T,4)}, v3", 'X'); e.ds(f"ds_read_b128 {v(T+4,4)}, v47", 'X'); e.ds(f"ds_read_b128 {v(T+8,4)}, v1", 'X')
    run(e, vr[4:])
    e.wait(lg=['X'])
    e(f"v_max3_f32 v{T+12}, v{vL}, v{vL+1}, v{vL+2}")
    for i in range(6): e(f"v_max3_f32 v{T+12+(i&1)}, v{T+12 if i != 1 else vL+3}, v{T+2*i}, v{T+2*i+1}".replace(f"v{T+12+(i&1)}, v{T+12},", f"v{T+12+(i&1)}, v{T+12+(i&1)},"))
    e(f"v_max_f32 v{T+12}, v{T+12}, v{T+13}")
    for qb in range(4): e(f"v_add_f32 v{vL+qb}, v{vL+qb}, v{T+qb}")
    e(f"v_cmp_lt_f32 vcc, s{sTHR}, v{T+12}")
    vI = vNEGM
    for qb in range(4): e(f"v_rcp_f32 v{vI+2*qb}, v{vL+qb}")
    e("s_cbranch_vccnz K1_FB")
    for qb in range(4): e(f"v_mov_b32 v{vI+2*qb+1}, v{vI+2*qb}")
    vO = vQ
    def conv(kk, qb):
        t = vS + 8*((kk*4 + qb) % 4); ops = []
        for u in range(2):
            for r in range(4): ops.append(f"v_accvgpr_read_b32 v{t+4*u+r}, a{aO + 16*(2*kk+u) + 4*qb + r}")
        for h in range(4): ops.append(f"v_pk_mul_f32 {v(t+2*h,2)}, {v(t+2*h,2)}, {v(vI+2*qb,2)}")
        for h in range(4): ops.append(f"v_cvt_pk_bf16_f32 v{vO + 16*kk + 4*qb + h}, v{t+2*h}, v{t+2*h+1}")
        ops.append(lambda: e.ds(f"ds_write_b128 v{vGR}, {v(vO + 16*kk + 4*qb, 4)} offset:{(kk >> 1)*SLOT + ((kk & 1)*4 + qb)*1024}", 'OW'))
        return ops
    S1.waits[88] = [('F', 6), ('F', 7)]
    for m in range(64, 128):
        if m in S1.waits: e.wait(lg=S1.waits[m])
        e(pv_mf(m, cfg, 1))
        for op, tag, gg in S1.gap(m):
            if tag == 'vr': run(e, op)
        if m == 112: e("s_barrier")
    flat(e, wo_dma(2))
    for kk in range(4):
        for qb in range(4): run(e, conv(kk, qb))
    if cfg.dump_o:
        sv = list(e.vm); dump(e, vO, 16, WS_DBG + 0x1000000); e.vm = sv
    e.wait(lg_all=True)
    e("s_barrier")
    tl(e, 6)
    vA = [192, 64]; vOUT = 112
    def gread(n):
        j, kk, qb = 1 + (n >> 4), (n >> 2) & 3, n & 3
        e.ds(f"ds_read_b128 {a(4*n, 4)}, v{vGR+j} offset:{(kk >> 1)*SLOT + ((kk & 1)*4 + qb)*1024}", ('G', n >> 3))
    per = []; ustart = []
    for U in range(16):
        ps, i = U >> 3, U & 7
        ustart.append(8*len(per))
        for cb in range(3 if ps else 4):
            d = dict(cb=cb, base=(SLOT if U % 3 == 1 else 0), first=(i == 0),
                     acc=lambda qb, ps=ps, cb=cb: v(vA[ps] + 16*cb + 4*qb, 4),
                     b=lambda ks, qb, i=i: (v(vO + 16*(2*i + ks) + 4*qb, 4) if i < 2 else a(4*((2*i + ks - 4)*4 + qb), 4)))
            if cb == 0:
                d['rpre'] = [lambda U=U: e.wait(vm=[('WU', U)])]
                if U % 3 == 2: d['rpre'] += [f"v_add_u32 v{vWA+c}, {4*SLOT}, v{vWA+c}" for c in range(4)]
                if U % 3 == 0 and U: d['rpre'] += [f"v_subrev_u32 v{vWA+c}, {4*SLOT}, v{vWA+c}" for c in range(4)]
                if i >= 2 and not ps: d['lg'] = [('G', i - 2)]
            per.append(d)
    ustart.append(8*len(per))
    G = Gemm(e, per)
    for U in range(3, 16):
        G.chain(wo_dma(U), ustart[U - 2] - 7, ustart[U - 1] - 8)
    G.chain([(lambda n=n: gread(n), 1, 0) for n in range(48)], 1, 32*4 - 1)
    def outs(ps):
        it = []
        for cb in range(3 if ps else 4):
            for pr in range(2):
                o = vOUT + 4*((2*cb + pr) % 4); A = vA[ps] + 16*cb + 8*pr
                it += [(f"v_cvt_pk_bf16_f32 v{o+h}, v{A+2*h}, v{A+2*h+1}", 1, 0) for h in range(4)]
                it.append((lambda o=o, cb=cb, pr=pr: e.vmem(f"buffer_store_dwordx4 {v(o,4)}, v{vSTO}, {s(S_P,4)}, s{sT2 + pr} offen offset:{256*cb}{cfg.sflag}", 'ST'), 2, 0))
        return it
    G.S.put(ustart[7], [f"s_lshl_b32 s{sT2}, s{sW}, 10", f"s_add_u32 s{sT3}, s{sT2}, {4*57344}"], 2)
    G.chain(outs(0), ustart[8] + 3, ustart[13])
    print('oproj', G.S.report())
    G.emit()
    e(f"s_mul_i32 s{sT2}, s{sW}, 768"); e(f"s_add_u32 s{sT2}, s{sT2}, 4096"); e(f"s_add_u32 s{sT3}, s{sT2}, {4*57344}")
    e.nop(3)
    flat(e, outs(1))
    tl_end(e, 1, 56, 57, 7)
    e("K1_END:")
    e("s_endpgm")
    main = list(e.lines)
    e("K1_FB:")
    e(f"s_mov_b32 s{sTHR}, 0x7f800000")
    run(e, loop_addr_ops(cfg))
    for c in range(4): e(f"v_add_u32 v{vWA+c}, {2*SLOT}, v{vWA+c}")
    for i in range(4): e(f"v_mov_b32 v{vL+i}, 0xff800000")
    e(f"s_mov_b32 s{sCNT}, 32")
    e(f"s_mov_b32 s{sR[0]}, s{sWOFF}")
    e("K1_FBL:")
    e("s_waitcnt vmcnt(0) lgkmcnt(0)")
    e("s_barrier")
    e(f"s_add_u32 s{sR[0]+1}, s{sR[0]}, 4096")
    flat(e, dma_items(e, cfg, S_K, 0, 0, 'K', False))
    e(f"s_add_u32 s{sR[0]}, s{sR[0]}, {SLOT}")
    e("s_waitcnt vmcnt(0)")
    e("s_barrier")
    for f in range(16): e(k_read(f, 0))
    e("s_waitcnt lgkmcnt(0)")
    for m in range(64): e(qk_mf(m, cfg, c0=0))
    e.nop(8)
    for kb in range(2):
        for h in range(2):
            for qb in range(4): e(f"v_max3_f32 v{vL+qb}, v{vL+qb}, v{Sr(kb,qb)+2*h}, v{Sr(kb,qb)+2*h+1}")
    e(f"s_sub_u32 s{sCNT}, s{sCNT}, 1"); e(f"s_cmp_lg_u32 s{sCNT}, 0")
    e("s_cbranch_scc1 K1_FBL")
    e("s_barrier")
    tile_offs(e)
    flat(e, dma_items(e, cfg, S_K, 0, 0, 'K', False)); flat(e, dma_items(e, cfg, S_K, 1, SLOT, 'K', False)); flat(e, dma_items(e, cfg, S_V, 0, 2*SLOT, 'V', False))
    e("s_waitcnt vmcnt(0)")
    e("s_barrier")
    e("s_branch K1_RST")
    errs = check_hazards(main[:l1] + main[l0:], 'k1b') + check_hazards(e.lines[len(main):], 'k1fb')
    for x in errs[:8]: print('HAZARD', x)
    assert not errs
    return e
NAME = 'k1_kernel'
DESC = (512, 96, 256)
LAUNCH = f"grid=({GRID},1,1) block=(256,1,1) lds=163840"
```

```python
from common import *
import k1
from k1 import run, spread, dma, MF
GRID = 256
UNIT = 14464
NF = 14
aF = 0
S_G, S_H, S_P = 8, 16, 20
sW, sGOFF, sLB, sT0, sT1 = 3, 24, 25, 26, 27
vGD = 8
vGA = 24
vH = 32
vACC = 144
class Cfg(k1.Cfg):
    D = 6; WG = 2; CAP = 3; BARG = 23; BARL = 3
    wmap = 'X'
    pf_wd = False

def fragh(i, u): return a(aF + 4 * (i % NF) + 2 * u, 2)
def frag(i): return a(aF + 4 * (i % NF), 4)

def gu_dma(e, tile, unit):
    ops = []
    for q in range(7):
        g = []
        if q == 0: g.append(f"s_add_u32 s{sT0}, s{sGOFF}, {tile*64*3584}")
        if q % 4 == 0: g += [f"s_add_u32 m0, s{sLB}, {unit*UNIT + 4096*(q//4)}", "s_nop 0"]
        g.append(lambda q=q: dma(e, vGD + q, S_G, sT0, 1024*(q & 3), ('G', tile)))
        ops.append(g)
    return ops

def gen(cfg=Cfg):
    k1.NF = NF
    e = Em()
    e(f"s_cmp_ge_u32 s2, {GRID}")
    e("s_cbranch_scc1 K2_END")
    tl(e, 0)
    e(f"s_load_dwordx4 s[48:51], s[0:1], {ARG['wg']}")
    e(f"s_load_dwordx2 s[56:57], s[0:1], {ARG['ws']}")
    if cfg.pf_wd: e(f"s_load_dwordx2 s[52:53], s[0:1], {ARG['wd']}")
    e("v_lshrrev_b32 v1, 6, v0")
    e("v_and_b32 v2, 63, v0")
    e(f"v_readfirstlane_b32 s{sW}, v1")
    e("s_and_b32 s4, s2, 7")
    J, RB = 5, 6
    if cfg.wmap in 'XY':
        A_, B_ = (J, RB) if cfg.wmap == 'X' else (RB, J)
        e(f"s_bfe_u32 s{A_}, s2, 0x10003"); e(f"s_lshl1_add_u32 s{A_}, s4, s{A_}"); e(f"s_lshr_b32 s{B_}, s2, 4")
    else:
        e(f"s_bfe_u32 s{RB}, s2, 0x20003"); e("s_lshr_b32 s7, s4, 1"); e(f"s_lshl2_add_u32 s{RB}, s7, s{RB}")
        e(f"s_lshr_b32 s{J}, s2, 5"); e("s_and_b32 s7, s4, 1"); e(f"s_lshl3_add_u32 s{J}, s7, s{J}")
    e("v_lshrrev_b32 v3, 5, v2")
    for q in range(7):
        e(f"v_add_u32 v4, {64*q}, v2")
        e("v_mul_u32_u24 v5, 4682, v4")
        e("v_lshrrev_b32 v5, 16, v5")
        e(f"v_mul_u32_u24 v5, {3584 - 14*16}, v5")
        e(f"v_lshl_add_u32 v{vGD+q}, v4, 4, v5")
        if q & 3: e(f"v_subrev_u32 v{vGD+q}, {1024*(q&3)}, v{vGD+q}")
    e(f"s_and_b32 s{sT0}, s{sW}, 1")
    e(f"s_mul_i32 s{sGOFF}, s{sT0}, {32*3584}")
    e(f"s_mul_i32 s{sLB}, s{sT0}, 7168")
    e(f"s_lshr_b32 s{sT1}, s{sW}, 1")
    e(f"s_mul_i32 s7, s{sT1}, {UNIT}")
    e(f"s_add_u32 s{sLB}, s{sLB}, s7")
    e(f"s_mul_i32 s7, s5, 224")
    e("v_lshlrev_b32 v6, 4, v2")
    e(f"s_lshl2_add_u32 s40, s6, s{sW}")
    e(f"s_mul_i32 s31, s40, 28672")
    e(f"s_add_u32 s31, s31, {WS_H2}")
    e(f"s_cmp_eq_u32 s{sT1}, 0")
    e("s_waitcnt lgkmcnt(0)")
    e("s_cselect_b32 s48, s48, s50")
    e("s_cselect_b32 s49, s49, s51")
    srd_off(e, S_G, 48, 49, "s7", 447*3584 + 224)
    srd_off(e, S_H, 56, 57, "s31", 28672)
    def hload(t):
        e.vmem(f"buffer_load_dwordx4 {v(vH+4*t,4)}, v6, {s(S_H,4)}, s{32 + t//4} offen offset:{1024*(t%4)}", ('H', t))
    for i in range(7): e(f"s_movk_i32 s{32+i}, {4096*i}")
    run(e, gu_dma(e, 0, 0))
    for t in range(4): hload(t)
    run(e, gu_dma(e, 1, 2))
    for t in range(4, 8): hload(t)
    run(e, gu_dma(e, 2, 4))
    for t in range(8, 12): hload(t)
    e(f"s_mul_i32 s7, s40, 114688"); e(f"s_mul_i32 s31, s5, 7168"); e("s_add_u32 s7, s7, s31"); e(f"s_add_u32 s7, s7, {WS_HH}")
    srd_off(e, S_P, 56, 57, "s7", 7168)
    e("v_bfe_u32 v1, v2, 2, 2")
    e("v_and_b32 v4, 1, v2"); e("v_lshlrev_b32 v4, 4, v4"); e("v_bfe_u32 v5, v2, 1, 1"); e("v_lshl_add_u32 v4, v5, 3, v4")
    e("v_lshl_add_u32 v5, v3, 2, v1"); e("v_mul_u32_u24 v7, 224, v5"); e("v_add_u32 v7, v7, v4")
    e("v_bfe_u32 v31, v2, 4, 1")
    e(f"v_mul_u32_u24 v{vGA}, {UNIT}, v31"); e(f"v_add_u32 v{vGA}, v{vGA}, v7")
    ORD = [(b, ks) for ks in range(4) for b in range(7)]
    ORDL = [(b, ks) for b in range(7) for ks in range(4)]
    def greads(O): return [[f"ds_read_b64_tr_b16 {fragh(i, u)}, v{vGA} offset:{((ks >> 1)*32 + (ks & 1)*8 + u*16)*224 + b*32}" for u in (0, 1)] for i, (b, ks) in enumerate(O)]
    gr, grl = greads(ORD), greads(ORDL)
    tl(e, 1)
    e.wait(vm=[('G', 0)])
    e("s_barrier")
    tl(e, 2)
    npre = cfg.D
    for i in range(npre):
        for t in gr[i]: e.ds(t, ('F', i))
    gunit = [0, 2, 4, 6, 8, 0, 2]
    dg = list(range(1, 22, 3))
    def out_ops(b):
        A = vACC + 16*b
        ops = [f"v_pk_mul_f32 {v(A+j,2)}, {v(A+j,2)}, {v(A+8+j,2)}" for j in range(0, 8, 2)]
        ops += [f"v_cvt_pk_bf16_f32 v{A+8+p}, v{A+2*p}, v{A+2*p+1}" for p in range(4)]
        ops.append(lambda: e.vmem(f"buffer_store_dwordx4 {v(A+8,4)}, v6, {s(S_P,4)}, s{32 + b//4} offen offset:{1024*(b%4)}", 'ST'))
        return ops
    for tile in range(7):
        mf = []; pre = {}
        for i, (b, ks) in enumerate(ORDL if tile == 6 else ORD):
            t = 4*tile + ks
            acc = v(vACC + 16*b, 16)
            mf.append(f"{MF} {acc}, {frag(i)}, {v(vH + 4*t, 4)}, {0 if t == 0 else acc}")
            if b == 0: pre[i] = (lambda t=t: e.wait(vm=[('H', t)]))
        fill = {}
        if tile == 0:
            spread(fill, gu_dma(e, 3, 6) + [lambda t=t: hload(t) for t in range(12, 16)] + gu_dma(e, 4, 8) + [lambda t=t: hload(t) for t in range(16, 20)], list(range(0, 22)))
        elif tile == 1:
            spread(fill, gu_dma(e, 5, 0) + [lambda t=t: hload(t) for t in range(20, 24)], list(range(0, 22, 2)))
        elif tile == 2: spread(fill, gu_dma(e, 6, 2) + [lambda t=t: hload(t) for t in range(24, 28)], list(range(0, 22, 2)))
        elif tile == 3 and cfg.pf_wd:
            ops = ["s_lshr_b32 s7, s2, 3", f"s_lshl2_add_u32 s7, s7, s{sW}", "s_mul_i32 s7, s7, 12544", "v_lshlrev_b32 v4, 6, v2", "v_add_u32 v4, s7, v4",
                   lambda: srd(e, 44, 52, 53, 1792*896)]
            for i in range(4):
                ops += [lambda: e.vmem("buffer_load_dword v5, v4, s[44:47], 0 offen", 'PF'), "v_add_u32 v4, 3136, v4"]
            spread(fill, ops, list(range(0, 22)))
        elif tile == 6:
            for b in range(5):
                o = out_ops(b); g = 4*b + 3 + 4
                fill[g] = ["s_nop 1"] + o[:3]; fill[g+1] = o[3:6]; fill[g+2] = o[6:]
        if tile < 6:
            d = (gunit[tile+1] - gunit[tile]) * UNIT
            sw = [f"v_add_u32 v{vGA}, {hex(d & 0xffffffff)}, v{vGA}"]
            npre = k1.phase(e, cfg, mf, gr, npre, grl if tile == 5 else gr, fill, bar=[('G', tile + 1)], switch=sw, pre=pre)
        else:
            k1.phase(e, cfg, mf, grl, npre, None, fill, pre=pre)
    tl(e, 3)
    e.nop(4)
    run(e, out_ops(5))
    run(e, out_ops(6))
    tl_end(e, 3, 56, 57, 4)
    e("K2_END:")
    e("s_endpgm")
    k1.NF = 16
    return e
NAME = 'k2_kernel'
DESC = (320, 96, 256)
LAUNCH = f"grid=({GRID},1,1) block=(256,1,1) lds={10*UNIT}"
```

```python
from common import *
GRID = 256
NP = 8
ACC, X, XB, G, S2, SB, P = 16, 32, 48, 56, 64, 72, 80
class Cfg:
    rgmap = 0
    pf = ()
def gen(cfg=Cfg):
    e = Em()
    e(f"s_cmp_ge_u32 s2, {GRID}")
    e(f"s_cbranch_scc1 K2A_END")
    tl(e, 0)
    e(f"s_load_dwordx2 s[4:5], s[0:1], {ARG['x']}")
    e(f"s_load_dwordx2 s[6:7], s[0:1], {ARG['ws']}")
    if cfg.rgmap == 1:
        e("s_and_b32 s36, s2, 7"); e("s_lshl_b32 s36, s36, 5"); e("s_lshr_b32 s3, s2, 3"); e("s_add_u32 s36, s36, s3")
    else: e("s_mov_b32 s36, s2")
    e("v_cmp_gt_u32 vcc, 224, v0")
    e("v_lshrrev_b32 v1, 4, v0")
    e("v_and_b32 v2, 15, v0")
    e("v_lshlrev_b32 v6, 9, v1")
    e("v_lshl_add_u32 v6, v2, 4, v6")
    e("v_mov_b32 v7, 0x7fff0000")
    e("v_cndmask_b32 v6, v7, v6, vcc")
    e(f"s_mul_i32 s3, s36, {NP*7168}")
    e(f"s_add_u32 s3, s3, {WS_PART}")
    e("v_lshrrev_b32 v3, 2, v0")
    e("v_and_b32 v4, 3, v0")
    e("s_waitcnt lgkmcnt(0)")
    srd_off(e, 12, 6, 7, "s3", NP*7168)
    for h in range(NP):
        if h: e(f"s_mov_b32 s10, {h*7168}")
        for u in range(2):
            e.vmem(f"buffer_load_dwordx4 {v(P+8*h+4*u,4)}, v6, s[12:15], {'s10' if h else 0} offen offset:{256*u}", ('P', h))
    e("v_lshlrev_b32 v8, 5, v3")
    e("v_cndmask_b32 v8, v7, v8, vcc")
    e("v_mul_u32_u24 v9, 896, v4")
    e("v_lshl_add_u32 v9, v1, 6, v9")
    e("v_and_b32 v5, 3, v3")
    e("v_lshl_add_u32 v9, v5, 3, v9")
    e("v_cndmask_b32 v9, v7, v9, vcc")
    e("s_lshr_b32 s3, s36, 2"); e("s_and_b32 s8, s36, 3")
    e(f"s_mul_i32 s3, s3, 28672")
    e(f"s_mul_i32 s9, s8, {4*896}"); e("s_add_u32 s9, s9, s3")
    srd_off(e, 16, 4, 5, "s9", 20*896)
    e(f"s_movk_i32 s28, {16*896}")
    for hi in range(2):
        for u in range(2): e.vmem(f"buffer_load_dwordx2 {v(XB+4*hi+2*u,2)}, v9, s[16:19], {'s28' if hi else 0} offen offset:{32*u}", 'X')
    srd(e, 20, 6, 7, 0x10000)
    def vec(dst, base, tag):
        e(f"s_movk_i32 s11, {base}")
        for q in range(2): e.vmem(f"buffer_load_dwordx4 {v(dst+4*q,4)}, v8, s[20:23], s11 offen offset:{16*q}", tag)
    vec(G, WS_GA, 'G'); vec(S2, WS_S2, 'S'); vec(SB, WS_SB, 'S')
    e(f"s_add_u32 s9, s9, {WS_X1}")
    srd_off(e, 24, 6, 7, "s9", 20*896)
    e("s_lshl_b32 s8, s8, 7"); e("s_add_u32 s3, s3, s8"); e(f"s_add_u32 s3, s3, {WS_H2}")
    srd_off(e, 32, 6, 7, "s3", 28672)
    e("v_lshlrev_b32 v11, 9, v3"); e("v_lshl_add_u32 v11, v4, 5, v11"); e("v_cndmask_b32 v11, v7, v11, vcc")
    e("v_lshlrev_b32 v12, 6, v4"); e("v_lshrrev_b32 v13, 6, v0"); e("v_lshl_add_u32 v13, v13, 4, v12")
    for h in range(NP):
        e.wait(vm=[('P', h)])
        if h == 0: tl(e, 1)
        if h == NP-1: tl(e, 2)
        for u in range(2):
            for d in range(4):
                r = P + 8*h + 4*u + d; A = ACC + 8*(d >> 1) + 4*u + 2*(d & 1)
                if h == 0:
                    e(f"v_lshlrev_b32 v{A}, 16, v{r}"); e(f"v_and_b32 v{A+1}, 0xffff0000, v{r}")
                else:
                    t = 14
                    e(f"v_lshlrev_b32 v{t}, 16, v{r}"); e(f"v_and_b32 v{t+1}, 0xffff0000, v{r}")
                    e(f"v_pk_add_f32 {v(A,2)}, {v(A,2)}, {v(t,2)}")
        if h == NP - 2:
            pass
    e.wait(vm=['X', 'G'])
    for d in range(8):
        e(f"v_lshlrev_b32 v{X+2*d}, 16, v{XB+d}"); e(f"v_and_b32 v{X+2*d+1}, 0xffff0000, v{XB+d}")
    for i in range(0, 16, 2): e(f"v_pk_fma_f32 {v(X+i,2)}, {v(ACC+i,2)}, {v(G+(i&7),2)}, {v(X+i,2)}")
    for hi in range(2):
        b = X + 8*hi; t = 20 + 4*hi
        e(f"v_pk_add_f32 {v(t,2)}, {v(b,2)}, {v(b+2,2)}"); e(f"v_pk_mul_f32 {v(t+2,2)}, {v(b,2)}, {v(b,2)}")
    for k in (1, 2, 3):
        for hi in range(2):
            b = X + 8*hi; t = 20 + 4*hi
            if k > 1: e(f"v_pk_add_f32 {v(t,2)}, {v(t,2)}, {v(b+2*k,2)}")
            e(f"v_pk_fma_f32 {v(t+2,2)}, {v(b+2*k,2)}, {v(b+2*k,2)}, {v(t+2,2)}")
    e("v_add_f32 v16, v20, v21"); e("v_add_f32 v17, v24, v25"); e("v_add_f32 v18, v22, v23"); e("v_add_f32 v19, v26, v27")
    for d in range(2): e(f"v_cvt_pk_bf16_f32 v{XB+d}, v{X+2*d}, v{X+2*d+1}")
    for ror in (4, 8):
        for i in range(4): e(f"v_add_f32_dpp v{16+i}, v{16+i}, v{16+i} row_ror:{ror} row_mask:0xf bank_mask:0xf")
    k = 2
    for sw in ('v_permlane16_swap_b32', 'v_permlane32_swap_b32'):
        for i in range(4): e(f"v_mov_b32 v{20+i}, v{16+i}")
        for d in range(k, k + 3): e(f"v_cvt_pk_bf16_f32 v{XB+d}, v{X+2*d}, v{X+2*d+1}")
        k += 3
        for i in range(4): e(f"{sw} v{16+i}, v{20+i}")
        e("v_pk_add_f32 v[16:17], v[16:17], v[20:21]"); e("v_pk_add_f32 v[18:19], v[18:19], v[22:23]")
    e("ds_write_b128 v13, v[16:19]")
    for hi in range(2):
        for u in range(2): e.vmem(f"buffer_store_dwordx2 {v(XB+4*hi+2*u,2)}, v9, s[24:27], {'s28' if hi else 0} offen offset:{32*u}", 'ST')
    e("s_waitcnt lgkmcnt(0)")
    e("s_barrier")
    for i in range(4): e(f"ds_read_b128 {v(16+4*i,4)}, v12 offset:{16*i}")
    e(f"s_mov_b32 s30, {hex(f2u(1/448))}"); e("s_mov_b32 s31, s30")
    e("s_waitcnt lgkmcnt(0)")
    for a_, b_ in ((16, 20), (18, 22), (24, 28), (26, 30), (16, 24), (18, 26)): e(f"v_pk_add_f32 {v(a_,2)}, {v(a_,2)}, {v(b_,2)}")
    e("v_pk_mul_f32 v[16:17], v[16:17], s[30:31]"); e("v_pk_mul_f32 v[18:19], v[18:19], s[30:31]")
    for i in range(2): e(f"v_fma_f32 v{18+i}, -v{16+i}, v{16+i}, v{18+i}")
    for i in range(2): e(f"v_max_f32 v{18+i}, 0, v{18+i}")
    for i in range(2): e(f"v_add_f32 v{18+i}, {hex(f2u(1e-5))}, v{18+i}")
    for i in range(2): e(f"v_rsq_f32 v{18+i}, v{18+i}")
    e.wait(vm=['S'])
    for i in range(16): e(f"v_sub_f32 v{X+i}, v{X+i}, v{16+(i>>3)}")
    for i in range(16): e(f"v_mul_f32 v{X+i}, v{X+i}, v{18+(i>>3)}")
    for i in range(0, 16, 2): e(f"v_pk_fma_f32 {v(X+i,2)}, {v(X+i,2)}, {v(S2+(i&7),2)}, {v(SB+(i&7),2)}")
    for hi in range(2):
        for d in range(4): e(f"v_cvt_pk_bf16_f32 v{P+4*hi+d}, v{X+8*hi+2*d}, v{X+8*hi+2*d+1}")
        e(f"buffer_store_dwordx4 {v(P+4*hi,4)}, v11, s[32:35], 0 offen offset:{16*hi}")
    tl_end(e, 2, 6, 7, 3)
    e(f"K2A_END:")
    e("s_endpgm")
    return e
NAME = 'k2a_kernel'
DESC = (144, 96, 144)
LAUNCH = f"grid=({GRID},1,1) block=(256,1,1) lds=512"
```

```python
from common import *

def run(e, f):
    if callable(f): f()
    elif isinstance(f, (list, tuple)):
        for x in f: run(e, x)
    else: e(f)

class Sched:
    def __init__(self, n, budget=2, wrap=False):
        self.n, self.B, self.wrap = n, budget, wrap
        self.load = [0.0] * n
        self.ops = [[] for _ in range(n)]
        self.seq = 0
    def put(self, g, op, cost=1, tag=None, first=False):
        gg = g % self.n if self.wrap else g
        assert 0 <= gg < self.n, g
        self.load[gg] += cost
        self.seq += 1
        self.ops[gg].append((-1 if first else self.seq, op, tag, g))
        return g
    def reserve(self, g, cost=1):
        self.load[g % self.n] += cost
    def place(self, op, cost, lo, hi, ideal, tag=None):
        ideal = min(max(ideal, lo), hi)
        cand = sorted(range(lo, hi + 1), key=lambda g: (abs(g - ideal), g))
        for g in cand:
            if self.load[g % self.n] + cost <= self.B: return self.put(g, op, cost, tag)
        g = min(cand, key=lambda g: (self.load[g % self.n], abs(g - ideal)))
        return self.put(g, op, cost, tag)
    def chain(self, items, lo, hi, tag=None, slack=6):
        tot = sum(c for _, c, _ in items); acc = 0; prev = lo; out = []
        n = len(items)
        for k, (op, c, d) in enumerate(items):
            ideal = lo + int((hi - lo) * acc / tot)
            l = max(prev + d, lo) if k else lo
            h = min(hi, max(l, ideal + slack))
            g = self.place(op, c, l, h, ideal, tag)
            prev = g; acc += c; out.append(g)
        return out
    def gap(self, g):
        return [(op, tag, gg) for _, op, tag, gg in sorted(self.ops[g], key=lambda x: x[0])]
    def report(self):
        over = [(g, l) for g, l in enumerate(self.load) if l > self.B]
        return f"total slots {sum(self.load):.0f}/{self.n*self.B}, over-budget gaps {over}"
```

```python
from build2 import *
import k0b, k1b, red2, mlp2, down
ALL = [k0b, k1b, red2, mlp2, down]
if __name__ == '__main__':
    build(ALL, 't2.s')
    check('t2.s')
    TL.on = True
    build(ALL, 'tl.s')
    check('tl.s')
```

```python
from em import *
import math, struct
def f2u(x): return struct.unpack('<I', struct.pack('<f', x))[0]
C0 = math.log2(math.e) / 16.0
WS_MOD1, WS_GA, WS_S2, WS_SB, WS_GB = 0, 4096, 6144, 8192, 10240
WS_XHAT, WS_H2, WS_X1, WS_HH, WS_PART = 0x10000, 0x200000, 0x400000, 0x800000, 0x1000000
WS_PART2 = 0x7000000
WS_DBG = 0x4000000
ACT_BYTES = 2048 * 448 * 2
ARG = dict(x=0, k=8, v=16, wq=24, wo=32, bx=40, wg=48, wu=56, wd=64, c=72, wmod=80, out=88, dbg=96, ws=104)

def srd(e, d, lo, hi, nbytes):
    e(f"s_mov_b32 s{d}, s{lo}")
    e(f"s_and_b32 s{d+1}, s{hi}, 0xffff")
    e(f"s_mov_b32 s{d+2}, {nbytes}")
    e(f"s_mov_b32 s{d+3}, 0x20000")

def srd_off(e, d, lo, hi, off, nbytes):
    e(f"s_add_u32 s{d}, s{lo}, {off}")
    e(f"s_addc_u32 s{d+1}, s{hi}, 0")
    e(f"s_and_b32 s{d+1}, s{d+1}, 0xffff")
    e(f"s_mov_b32 s{d+2}, {nbytes}")
    e(f"s_mov_b32 s{d+3}, 0x20000")

def bfround(e, dst, src):
    e(f"v_cvt_pk_bf16_f32 {dst}, {src}, {src}")
    e(f"v_and_b32 {dst}, 0xffff0000, {dst}")

def kernel_head(name):
    return f".globl {name}\n.p2align 8\n.type {name},@function\n{name}:\n"

def kernel_desc(name, nvgpr, nsgpr, accum):
    return f""".amdhsa_kernel {name}
  .amdhsa_next_free_vgpr {nvgpr}
  .amdhsa_next_free_sgpr {nsgpr}
  .amdhsa_accum_offset {accum}
  .amdhsa_group_segment_fixed_size 0
  .amdhsa_kernarg_size 112
  .amdhsa_user_sgpr_count 2
  .amdhsa_user_sgpr_kernarg_segment_ptr 1
  .amdhsa_system_sgpr_workgroup_id_x 1
.end_amdhsa_kernel
"""

import os
class TL:
    on = False
WS_TL = 0x6400000
def tl(e, i):
    if TL.on: e(f"s_memrealtime s[{64+2*i}:{65+2*i}]")
def tlc(e, i):
    if TL.on: e(f"s_memtime s[{64+2*i}:{65+2*i}]")
def tl_end(e, kidx, ws_lo, ws_hi, n, wavereg=None, wait=True, extra=0):
    if not TL.on: return
    e("s_waitcnt vmcnt(0) lgkmcnt(0)" if wait else "s_waitcnt lgkmcnt(0)")
    tl(e, n)
    n += extra
    e("v_lshrrev_b32 v1, 6, v0")
    e("s_nop 1")
    e("v_readfirstlane_b32 s80, v1")
    e("s_nop 1")
    e("s_lshl2_add_u32 s80, s2, s80")
    e(f"s_add_u32 s80, s80, {kidx*1024}")
    e("s_lshl_b32 s80, s80, 6")
    e(f"s_add_u32 s80, s80, {WS_TL}")
    srd_off(e, 84, ws_lo, ws_hi, "s80", 64)
    e("s_waitcnt lgkmcnt(0)")
    e("s_mov_b64 exec, 1")
    e("v_mov_b32 v1, 0")
    for i in range(n + 1):
        e(f"v_mov_b32 v2, s{64+2*i}"); e(f"v_mov_b32 v3, s{65+2*i}")
        e(f"buffer_store_dwordx2 v[2:3], v1, s[84:87], 0 offen offset:{8*i}")
        e("s_nop 1")
```

```python
from common import *
NMOD = 84
NXH = 64
PF0 = 152
GRID = 256
class Cfg:
    pf_wq = True
    pf_k = False
    pf_v = False
    pf_all = True
    sflag = ''
    sec = 64
def gen(cfg=Cfg):
    e = Em()
    e(f"s_cmp_ge_u32 s2, {GRID}")
    e("s_cbranch_scc1 K0_END")
    tl(e, 0)
    def pf_all():
        if not cfg.pf_all: return
        srd_off(e, 36, 32, 33, "s34", 32768)
        e.vmem("buffer_load_dword v101, v100, s[36:39], 0 offen", 'PF')
        e.vmem("buffer_load_dword v101, v100, s[36:39], 0 offen offset:64", 'PF')
    if cfg.pf_all:
        e(f"s_load_dwordx2 s[32:33], s[0:1], {ARG['k']}")
        e("s_and_b32 s34, s2, 7"); e("s_lshl_b32 s34, s34, 5"); e("s_lshr_b32 s35, s2, 3"); e("s_add_u32 s34, s34, s35"); e("s_lshl_b32 s34, s34, 15")
        e("v_lshlrev_b32 v100, 7, v0")
    e(f"s_cmp_ge_u32 s2, {NMOD + NXH}")
    e("s_cbranch_scc1 K0_PF")
    e(f"s_load_dwordx2 s[4:5], s[0:1], {ARG['x']}")
    e(f"s_load_dwordx4 s[8:11], s[0:1], {ARG['c']}")
    e(f"s_load_dwordx2 s[6:7], s[0:1], {ARG['ws']}")
    e(f"s_cmp_ge_u32 s2, {NMOD}")
    e("s_cbranch_scc1 K0_XHAT")
    e("s_and_b32 s3, s2, 7")
    e("s_lshl_b32 s3, s3, 1")
    e("s_bfe_u32 s12, s2, 0x10003")
    e("s_add_u32 s3, s3, s12")
    e("s_and_b32 s12, s2, 0x70")
    e("s_add_u32 s3, s3, s12")
    e("s_cmp_ge_u32 s2, 80")
    e("s_cselect_b32 s3, s2, s3")
    e("v_lshrrev_b32 v1, 2, v0")
    e("v_and_b32 v2, 3, v0")
    e("s_movk_i32 s12, 5376")
    e("v_mul_lo_u32 v3, v1, s12")
    e("v_lshl_add_u32 v3, v2, 4, v3")
    e("s_lshl_b32 s13, s3, 6")
    e("v_lshlrev_b32 v4, 1, v1")
    e("s_waitcnt lgkmcnt(0)")
    srd(e, 16, 10, 11, 448 * 5376)
    srd(e, 20, 8, 9, 896)
    srd(e, 24, 6, 7, 0x10000)
    for i in range(7):
        if i: e(f"s_add_u32 s13, s13, {64*5376}")
        e.vmem(f"buffer_load_dwordx4 {v(16+4*i,4)}, v3, s[16:19], s13 offen", ('w', i))
    for i in range(7):
        e.vmem(f"buffer_load_short_d16_hi v{8+i}, v4, s[20:23], 0 offen offset:{128*i}", ('c', i))
    pf_all()
    e("s_mul_i32 s14, s3, 4682")
    e("s_lshr_b32 s14, s14, 16")
    e("s_mul_i32 s15, s14, 14")
    e("s_sub_u32 s15, s3, s15")
    e.wait(vm=[('c', 6)])
    for i in range(7): e(f"v_and_b32 v{8+i}, 0xffff0000, v{8+i}")
    for i in range(7): e(f"v_mul_f32 v{48+i}, {hex(f2u(-math.log2(math.e)))}, v{8+i}")
    for i in range(7): e(f"v_exp_f32 v{48+i}, v{48+i}")
    for i in range(7): e(f"v_add_f32 v{48+i}, 1.0, v{48+i}")
    for i in range(7): e(f"v_rcp_f32 v{48+i}, v{48+i}")
    for i in range(7): e(f"v_mul_f32 v{8+i}, v{8+i}, v{48+i}")
    for i in range(7): bfround(e, f"v{8+i}", f"v{8+i}")
    for i in range(7):
        for p in range(4):
            w = 16 + 4*i + p
            e(f"v_lshlrev_b32 v56, 16, v{w}")
            e(f"v_and_b32 v57, 0xffff0000, v{w}")
            if i == 0:
                e(f"v_mul_f32 v{48+2*p}, v56, v8")
                e(f"v_mul_f32 v{49+2*p}, v57, v8")
            else:
                e(f"v_fmac_f32 v{48+2*p}, v56, v{8+i}")
                e(f"v_fmac_f32 v{49+2*p}, v57, v{8+i}")
    e("v_lshlrev_b32 v5, 5, v0")
    e("ds_write_b128 v5, v[48:51]")
    e("ds_write_b128 v5, v[52:55] offset:16")
    e("s_waitcnt lgkmcnt(0)")
    e("s_barrier")
    e("v_cmp_gt_u32 vcc, 64, v0")
    e("s_and_saveexec_b64 s[28:29], vcc")
    e("s_cbranch_execz K0_END")
    e("v_and_b32 v1, 31, v0")
    e("v_lshrrev_b32 v2, 5, v0")
    e("v_lshlrev_b32 v5, 2, v1")
    e("v_lshl_add_u32 v5, v2, 12, v5")
    e("v_add_u32 v6, 128, v5")
    for i in range(8):
        e(f"ds_read2st64_b32 {v(16+4*i,2)}, v5 offset0:{2*i} offset1:{2*i+1}")
        e(f"ds_read2st64_b32 {v(18+4*i,2)}, v6 offset0:{2*i} offset1:{2*i+1}")
    e("s_cmp_eq_u32 s14, 1")
    e("s_cselect_b32 s20, 1.0, 0")
    e("s_cmp_eq_u32 s14, 4")
    e("s_cselect_b32 s20, 1.0, s20")
    e("s_cmp_lt_u32 s14, 2")
    e(f"s_cselect_b32 s21, {hex(f2u(C0))}, 1.0")
    e("s_cselect_b32 s22, 64, 32")
    e("s_mov_b32 s23, 32")
    for sec, base in ((1, 0), (2, WS_GA), (3, WS_SB), (4, WS_S2), (5, WS_GB)):
        e(f"s_cmp_eq_u32 s14, {sec}")
        e(f"s_cselect_b32 s23, {base}, s23")
    e("s_lshl_b32 s15, s15, 2")
    e("v_bfe_u32 v7, v1, 2, 2")
    e("v_add_u32 v7, s15, v7")
    e("v_mul_lo_u32 v7, v7, s22")
    e("v_and_b32 v8, 3, v1")
    e("v_lshl_add_u32 v7, v8, 2, v7")
    e("v_and_b32 v8, 16, v1")
    e("v_add_u32 v7, v8, v7")
    e("s_waitcnt lgkmcnt(0)")
    n = 32; base = 16
    while n > 1:
        for i in range(n // 2): e(f"v_add_f32 v{base+i}, v{base+2*i}, v{base+2*i+1}")
        n //= 2
    e("v_mov_b32 v17, v16")
    e("s_nop 1")
    e("v_permlane32_swap_b32 v16, v17")
    e("v_add_f32 v16, v16, v17")
    bfround(e, "v16", "v16")
    e("v_add_f32 v16, s20, v16")
    bfround(e, "v16", "v16")
    e("v_mul_f32 v16, s21, v16")
    e("v_cmp_gt_u32 vcc, 32, v0")
    e("s_and_b64 exec, exec, vcc")
    e(f"buffer_store_dword v16, v7, s[24:27], s23 offen{cfg.sflag}")
    tl_end(e, 0, 6, 7, 1)
    e("s_endpgm")
    e("K0_XHAT:")
    e(f"s_sub_u32 s3, s2, {NMOD}")
    e("v_lshrrev_b32 v1, 3, v0")
    e("v_and_b32 v2, 3, v0")
    e("v_bfe_u32 v5, v0, 2, 1")
    e("v_mul_u32_u24 v3, 896, v1")
    e("v_lshl_add_u32 v3, v2, 3, v3")
    e("v_lshl_add_u32 v3, v5, 6, v3")
    e(f"s_mul_i32 s13, s3, {32*896}")
    e("v_lshrrev_b32 v4, 4, v1")
    e("v_mul_u32_u24 v4, 14336, v4")
    e("v_lshl_add_u32 v4, v5, 10, v4")
    e("v_lshl_add_u32 v4, v2, 8, v4")
    e("v_and_b32 v6, 15, v1")
    e("v_lshl_add_u32 v4, v6, 4, v4")
    e("s_waitcnt lgkmcnt(0)")
    srd(e, 16, 4, 5, ACT_BYTES)
    srd_off(e, 24, 6, 7, WS_XHAT, ACT_BYTES)
    for i in range(7):
        for u in range(2):
            e.vmem(f"buffer_load_dwordx2 {v(8+4*i+2*u,2)}, v3, s[16:19], s13 offen offset:{128*i+32*u}", ('x', i))
    pf_all()
    X = 40
    for i in range(7):
        e.wait(vm=[('x', i)])
        for p in range(4):
            e(f"v_lshlrev_b32 v{X+8*i+2*p}, 16, v{8+4*i+p}")
            e(f"v_and_b32 v{X+8*i+2*p+1}, 0xffff0000, v{8+4*i+p}")
    ln_stats(e, X, 56, 'v5', 'v6', tmp=8)
    for i in range(7):
        for p in range(8): e(f"v_sub_f32 v{X+8*i+p}, v{X+8*i+p}, v5")
        for p in range(8): e(f"v_mul_f32 v{X+8*i+p}, v{X+8*i+p}, v6")
        for p in range(4): e(f"v_cvt_pk_f16_f32 v{8+4*i+p}, v{X+8*i+2*p}, v{X+8*i+2*p+1}")
        if i and i % 2 == 0: e(f"s_add_u32 s13, s13, 4096")
        e(f"buffer_store_dwordx4 {v(8+4*i,4)}, v4, s[24:27], s13 offen offset:{2048*(i&1)}{cfg.sflag}")
    tl_end(e, 0, 6, 7, 1)
    e("s_endpgm")
    e("K0_PF:")
    e(f"s_load_dwordx4 s[8:11], s[0:1], {ARG['k']}")
    e(f"s_load_dwordx2 s[12:13], s[0:1], {ARG['wq']}")
    e(f"s_load_dwordx2 s[6:7], s[0:1], {ARG['ws']}")
    NT = (GRID - PF0) // 8 * 256
    sec = cfg.sec; lg = sec.bit_length() - 1
    e(f"s_sub_u32 s3, s2, {PF0}"); e("s_lshr_b32 s3, s3, 3"); e("s_lshl_b32 s3, s3, 8")
    e("v_add_u32 v1, s3, v0")
    e("s_and_b32 s4, s2, 7")
    e("s_lshl_b32 s5, s4, 10"); e("s_lshl_b32 s4, s4, 20")
    spr = 1024 // sec
    e(f"v_lshrrev_b32 v2, {10 - lg}, v1"); e("v_lshlrev_b32 v2, 13, v2"); e(f"v_and_b32 v3, {spr - 1}, v1"); e(f"v_lshl_add_u32 v2, v3, {lg}, v2")
    e(f"v_lshlrev_b32 v1, {lg}, v1")
    e("s_waitcnt lgkmcnt(0)")
    srd_off(e, 16, 12, 13, "s5", 447*8192 + 1024)
    srd_off(e, 20, 8, 9, "s4", 1 << 20)
    srd_off(e, 24, 10, 11, "s4", 1 << 20)
    pf_all()
    e(f"s_cmp_lt_u32 s2, {PF0}")
    e("s_cbranch_scc1 K0_END")
    if cfg.pf_wq:
        for i in range(-(-448*spr // NT)):
            e("buffer_load_dword v4, v2, s[16:19], 0 offen"); e(f"v_add_u32 v2, {NT//spr*8192}, v2")
    for i in range(-(-(1 << 20) // (sec*NT))):
        for on, sr in ((cfg.pf_k, 20), (cfg.pf_v, 24)):
            if on: e(f"buffer_load_dword v4, v1, s[{sr}:{sr+3}], 0 offen")
        e(f"v_add_u32 v1, {NT*sec}, v1")
    tl_end(e, 0, 6, 7, 1, wait=False)
    e("K0_END:")
    e("s_endpgm")
    return e

def red8(e, r, t):
    e("s_nop 1")
    e(f"v_add_f32_dpp {r}, {r}, {r} quad_perm:[1,0,3,2] row_mask:0xf bank_mask:0xf")
    e("s_nop 1")
    e(f"v_add_f32_dpp {r}, {r}, {r} quad_perm:[2,3,0,1] row_mask:0xf bank_mask:0xf")
    e("s_nop 1")
    e(f"v_add_f32_dpp {r}, {r}, {r} row_half_mirror row_mask:0xf bank_mask:0xf")

def ln_stats(e, X, n, mean, rinv, tmp):
    t = [f"v{tmp+i}" for i in range(4)]
    for i in range(4): e(f"v_add_f32 {t[i]}, v{X+i}, v{X+4+i}")
    for i in range(8, n): e(f"v_add_f32 {t[i%4]}, {t[i%4]}, v{X+i}")
    e(f"v_add_f32 {t[0]}, {t[0]}, {t[1]}"); e(f"v_add_f32 {t[2]}, {t[2]}, {t[3]}")
    e(f"v_add_f32 {mean}, {t[0]}, {t[2]}")
    red8(e, mean, None)
    e(f"v_mul_f32 {mean}, {hex(f2u(1/448))}, {mean}")
    for i in range(n):
        e(f"v_sub_f32 {rinv}, v{X+i}, {mean}")
        if i < 4: e(f"v_mul_f32 {t[i]}, {rinv}, {rinv}")
        else: e(f"v_fmac_f32 {t[i%4]}, {rinv}, {rinv}")
    e(f"v_add_f32 {t[0]}, {t[0]}, {t[1]}"); e(f"v_add_f32 {t[2]}, {t[2]}, {t[3]}")
    e(f"v_add_f32 {rinv}, {t[0]}, {t[2]}")
    red8(e, rinv, None)
    e(f"v_mul_f32 {rinv}, {hex(f2u(1/448))}, {rinv}")
    bfround(e, rinv, rinv)
    e(f"v_add_f32 {rinv}, {hex(f2u(1e-5))}, {rinv}")
    bfround(e, rinv, rinv)
    e(f"v_sqrt_f32 {rinv}, {rinv}")
    e("s_nop 0")
    bfround(e, rinv, rinv)
    e(f"v_rcp_f32 {rinv}, {rinv}")
    bfround(e, mean, mean)
NAME = 'k0_kernel'
DESC = (104, 96, 104)
LAUNCH = f"grid=({GRID},1,1) block=(256,1,1) lds=8192"
```

```python
from common import *
from sch import run
GRID = 224
MF = "v_mfma_f32_32x32x16_bf16"
S_G, S_H, S_P = 8, 12, 16
sW, sLB, sT0, sT1 = 3, 24, 26, 27
sUW, sUH = 32, 40
vGD, vGA, vHO, vF, vACC = 8, 12, 16, 32, 128
NF = 16
class Cfg:
    wmap = 'A'
    rot = False
    pf_wd = 2
    pfpos = 32*5 + 1
    sflag = ' sc1'
    lead = 5
    ahead = 2
    abl = ()
    barg = 18

def gen(cfg=Cfg):
    e = Em()
    e(f"s_cmp_ge_u32 s2, {GRID}")
    e("s_cbranch_scc1 K2_PF")
    tl(e, 0)
    e(f"s_load_dwordx4 s[48:51], s[0:1], {ARG['wg']}")
    e(f"s_load_dwordx2 s[56:57], s[0:1], {ARG['ws']}")
    if cfg.pf_wd: e(f"s_load_dwordx2 s[52:53], s[0:1], {ARG['wd']}")
    e("v_lshrrev_b32 v1, 6, v0")
    e("v_and_b32 v2, 63, v0")
    e("s_and_b32 s4, s2, 7")
    e(f"v_readfirstlane_b32 s{sW}, v1")
    J, RB = 5, 6
    e("s_lshr_b32 s7, s2, 3")
    if cfg.wmap in 'ABD':
        lr = {'A': 2, 'B': 1, 'D': 0}[cfg.wmap]
        e(f"s_and_b32 s{RB}, s4, {(8 >> lr) - 1}"); e(f"s_lshl_b32 s{RB}, s{RB}, {lr}"); e(f"s_and_b32 s{J}, s7, {(1 << lr) - 1}"); e(f"s_add_u32 s{RB}, s{RB}, s{J}")
        e(f"s_lshr_b32 s{J}, s4, {3 - lr}"); e(f"s_mul_i32 s{J}, s{J}, {28 >> lr}"); e(f"s_lshr_b32 s7, s7, {lr}"); e(f"s_add_u32 s{J}, s{J}, s7")
    else:
        e(f"s_mul_i32 s{J}, s4, 28"); e(f"s_add_u32 s7, s7, s{J}"); e(f"s_and_b32 s{RB}, s7, 7"); e(f"s_lshr_b32 s{J}, s7, 3")
    e(f"s_lshr_b32 s{sT1}, s{sW}, 1"); e(f"s_lshl_b32 s{sT0}, s{sT1}, 2")
    e("v_lshrrev_b32 v3, 3, v2"); e("v_mul_u32_u24 v4, 3584, v3"); e("v_and_b32 v3, 2, v3"); e("v_and_b32 v5, 7, v2"); e("v_xor_b32 v3, v3, v5")
    e(f"v_xor_b32 v3, s{sT0}, v3"); e(f"v_lshl_add_u32 v{vGD}, v3, 4, v4")
    for q in range(1, 4): e(f"v_add_u32 v{vGD+q}, {q*(8*3584-1024)}, v{vGD}")
    e(f"v_lshlrev_b32 v{vHO}, 4, v2"); e(f"v_add_u32 v{vHO+1}, 28672, v{vHO}")
    e(f"s_lshl_b32 s{sLB}, s{sW}, 12")
    if cfg.rot:
        e(f"s_mul_i32 s7, s{J}, 9363"); e("s_lshr_b32 s7, s7, 16"); e("s_mul_i32 s7, s7, 7"); e(f"s_sub_u32 s7, s{J}, s7")
    else: e("s_mov_b32 s7, 0")
    e(f"s_and_b32 s{sT0}, s{sW}, 1"); e(f"s_mul_i32 s{sT0}, s{sT0}, {32*3584}")
    def tile_sg(t):
        if t: e("s_add_u32 s7, s7, 1"); e("s_cmp_eq_u32 s7, 7"); e("s_cselect_b32 s7, 0, s7")
        e(f"s_mul_i32 s{sUW+t}, s7, {64*3584}"); e(f"s_add_u32 s{sUW+t}, s{sUW+t}, s{sT0}"); e(f"s_lshl_b32 s{sUH+t}, s7, 12")
    tile_sg(0)
    e(f"s_lshl2_add_u32 s30, s{RB}, s{sW}")
    e(f"s_mul_i32 s31, s30, 57344"); e(f"s_add_u32 s31, s31, {WS_H2}")
    e(f"s_lshl_b32 s29, s{J}, 7")
    e(f"s_cmp_eq_u32 s{sT1}, 0")
    e("s_waitcnt lgkmcnt(0)")
    e("s_cselect_b32 s48, s48, s50")
    e("s_cselect_b32 s49, s49, s51")
    srd_off(e, S_G, 48, 49, "s29", 447*3584 + 128)
    srd_off(e, S_H, 56, 57, "s31", 57344)
    def tile_loads(t):
        ops = []
        for q in range(4):
            g = [f"s_add_u32 m0, s{sLB}, {t*16384}", "s_nop 0"] if q == 0 else []
            g.append(lambda q=q: e.vmem(f"buffer_load_dwordx4 v{vGD+q}, {s(S_G,4)}, s{sUW+t} offen offset:{1024*q} lds", ('G', t)))
            ops.append(g)
        for ks in range(4):
            for pb in range(2):
                ops.append([lambda ks=ks, pb=pb: e.vmem(f"buffer_load_dwordx4 {a(32*t + 8*ks + 4*pb, 4)}, v{vHO+pb}, {s(S_H,4)}, s{sUH+t} offen offset:{1024*ks}", ('H', t, ks))])
        return ops
    run(e, tile_loads(0))
    for t in range(1, 7): tile_sg(t)
    for t in range(1, cfg.ahead): run(e, tile_loads(t))
    e(f"s_mul_i32 s7, s30, 229376"); e(f"s_lshl_b32 s31, s{J}, 12"); e("s_add_u32 s7, s7, s31"); e(f"s_add_u32 s7, s7, {WS_HH}")
    srd_off(e, S_P, 56, 57, "s7", 114688 + 4096)
    e("s_mov_b32 s28, 114688")
    e("v_lshrrev_b32 v3, 5, v2"); e("v_bfe_u32 v1, v2, 2, 2")
    e("v_and_b32 v4, 1, v2"); e("v_lshlrev_b32 v4, 4, v4"); e("v_bfe_u32 v5, v2, 1, 1"); e("v_lshl_add_u32 v4, v5, 3, v4")
    e("v_lshl_add_u32 v5, v3, 2, v1"); e("v_lshl_add_u32 v4, v5, 7, v4")
    e("v_bfe_u32 v5, v2, 4, 1"); e("v_lshl_add_u32 v4, v5, 13, v4")
    e("v_bfe_u32 v1, v2, 3, 2")
    for b in range(4): e(f"v_xor_b32 v5, {b}, v1"); e(f"v_lshl_add_u32 v{vGA+b}, v5, 5, v4")
    FR = []
    for t in range(7):
        FR += [(t, ks, b) for b in range(4) for ks in range(4)] if t == 6 else [(t, ks, b) for ks in range(4) for b in range(4)]
    def rd(fi, u):
        t, ks, b = FR[fi]
        if fi == 64 and u == 0:
            for bb in range(4): e(f"v_add_u32 v{vGA+bb}, 65536, v{vGA+bb}")
        e.ds(f"ds_read_b64_tr_b16 {v(vF + 4*(fi % NF) + 2*u, 2)}, v{vGA+b} offset:{(t & 3)*16384 + ((ks >> 1)*32 + (ks & 1)*8 + 16*u)*128}", ('F', fi))
    def out_ops(b, pb):
        A = vACC + 32*b + 16*pb
        ops = [f"v_mul_f32 v{A+j}, v{A+j}, v{A+8+j}" for j in range(8)]
        ops += [f"v_cvt_pk_bf16_f32 v{A+8+p}, v{A+2*p}, v{A+2*p+1}" for p in range(4)]
        ops.append(lambda: e.vmem(f"buffer_store_dwordx4 {v(A+8,4)}, v{vHO}, {s(S_P,4)}, {'s28' if pb else 0} offen offset:{1024*b}{cfg.sflag}", 'ST'))
        return ops
    fill = {}
    for t in range(cfg.ahead, 7 if 'noload' not in cfg.abl else 0):
        for i, op in enumerate(tile_loads(t)): fill.setdefault(32*(t - cfg.ahead) + 1 + (i*cfg.barg)//12 , []).append(op)
    if cfg.pf_wd == 1:
        ops = ["s_lshr_b32 s7, s2, 3", f"s_lshl2_add_u32 s7, s7, s{sW}", "s_mul_i32 s7, s7, 14336", ["v_min_u32 v4, 55, v2", "v_lshlrev_b32 v4, 7, v4"], "v_add_u32 v4, s7, v4",
               lambda: srd(e, 20, 52, 53, 1792*896)]
        for i in range(2):
            ops += [lambda: e.vmem("buffer_load_dword v5, v4, s[20:23], 0 offen", 'PF'), "v_add_u32 v4, 7168, v4"]
        for i, op in enumerate(ops): fill.setdefault(cfg.pfpos + i, []).append(op)
    for b in range(3):
        ops = out_ops(b, 0) + out_ops(b, 1)
        for i in range(7): fill.setdefault(192 + 8*b + 9 + i, []).append(ops[4*i:4*i+4])
    tl(e, 1)
    e.wait(vm=[('G', 0)])
    e("s_barrier")
    tl(e, 2); tlc(e, 5)
    L = cfg.lead
    assert 32 - 2*L > cfg.barg
    for fi in range(L): rd(fi, 0); rd(fi, 1)
    for m in range(224):
        fi, pb = m >> 1, m & 1
        t, ks, b = FR[fi]
        if not pb: e.wait(lg=[('F', fi)], vm=[('H', t, ks)] if 'novm' not in cfg.abl else [])
        d = v(vACC + 32*b + 16*pb, 16)
        e(f"{MF} {d}, {v(vF + 4*(fi % NF), 4)}, {a(32*t + 8*ks + 4*pb, 4)}, {d if (t or ks) else 0}")
        if fi + L < 112: rd(fi + L, pb)
        if m % 32 == cfg.barg and t < 6:
            if 'novm' not in cfg.abl: e.wait(vm=[('G', t + 1)])
            e("s_barrier")
        if m >= 192 and m % 8 == 1 and m > 200: e.nop(6)
        run(e, fill.get(m, []))
    tl(e, 3); tlc(e, 6)
    e.nop(10)
    run(e, out_ops(3, 0)); run(e, out_ops(3, 1))
    tl_end(e, 3, 56, 57, 4, extra=2)
    e("s_endpgm")
    e("K2_PF:")
    if cfg.pf_wd == 2:
        e("s_cmp_ge_u32 s2, 256")
        e("s_cbranch_scc1 K2_END")
        e(f"s_load_dwordx2 s[52:53], s[0:1], {ARG['wd']}")
        e("s_lshr_b32 s7, s2, 3"); e("s_and_b32 s7, s7, 3"); e("s_lshl_b32 s7, s7, 15")
        e("v_lshlrev_b32 v4, 7, v0"); e("v_add_u32 v4, s7, v4")
        e("s_waitcnt lgkmcnt(0)")
        srd(e, 20, 52, 53, 1792*896)
        for i in range(13):
            e("buffer_load_dword v5, v4, s[20:23], 0 offen"); e(f"v_add_u32 v4, {1024*128}, v4")
    e("K2_END:")
    e("s_endpgm")
    return e
NAME = 'k2_kernel'
DESC = (480, 96, 256)
LAUNCH = f"grid=(256,1,1) block=(256,1,1) lds={7*16384}"
```

```python
from common import *
GRID = 256
NP = 8
ACC, X, XB, G, S2, SB, P = 16, 32, 48, 56, 64, 72, 80
class Cfg:
    rgmap = 0
    pf = 'A'
    lflag = ''
    sflag = ''
def gen(cfg=Cfg):
    e = Em()
    e(f"s_cmp_ge_u32 s2, {GRID}")
    e(f"s_cbranch_scc1 K2A_END")
    tl(e, 0)
    e(f"s_load_dwordx2 s[4:5], s[0:1], {ARG['x']}")
    e(f"s_load_dwordx2 s[6:7], s[0:1], {ARG['ws']}")
    if cfg.pf: e(f"s_load_dwordx4 s[40:43], s[0:1], {ARG['wg']}")
    if cfg.rgmap == 1:
        e("s_and_b32 s36, s2, 7"); e("s_lshl_b32 s36, s36, 5"); e("s_lshr_b32 s3, s2, 3"); e("s_add_u32 s36, s36, s3")
    else: e("s_mov_b32 s36, s2")
    e("v_cmp_gt_u32 vcc, 224, v0")
    e("v_lshrrev_b32 v1, 4, v0")
    e("v_and_b32 v2, 15, v0")
    e("v_lshlrev_b32 v6, 9, v1")
    e("v_lshl_add_u32 v6, v2, 4, v6")
    e("v_mov_b32 v7, 0x7fff0000")
    e("v_cndmask_b32 v6, v7, v6, vcc")
    e(f"s_mul_i32 s3, s36, {NP*7168}")
    e(f"s_add_u32 s3, s3, {WS_PART}")
    e("v_lshrrev_b32 v3, 2, v0")
    e("v_and_b32 v4, 3, v0")
    e("s_waitcnt lgkmcnt(0)")
    tl(e, 1)
    srd_off(e, 12, 6, 7, "s3", NP*7168)
    for h in range(NP):
        if h: e(f"s_mov_b32 s10, {h*7168}")
        for u in range(2):
            e.vmem(f"buffer_load_dwordx4 {v(P+8*h+4*u,4)}, v6, s[12:15], {'s10' if h else 0} offen offset:{256*u}{cfg.lflag}", ('P', h))
    e("v_lshlrev_b32 v8, 5, v3")
    e("v_cndmask_b32 v8, v7, v8, vcc")
    e("v_mul_u32_u24 v9, 896, v4")
    e("v_lshl_add_u32 v9, v1, 6, v9")
    e("v_and_b32 v5, 3, v3")
    e("v_lshl_add_u32 v9, v5, 3, v9")
    e("v_cndmask_b32 v9, v7, v9, vcc")
    e("s_lshr_b32 s3, s36, 2"); e("s_and_b32 s8, s36, 3")
    e(f"s_mul_i32 s3, s3, 28672")
    e(f"s_mul_i32 s9, s8, {4*896}"); e("s_add_u32 s9, s9, s3")
    srd_off(e, 16, 4, 5, "s9", 20*896)
    e(f"s_movk_i32 s28, {16*896}")
    for hi in range(2):
        for u in range(2): e.vmem(f"buffer_load_dwordx2 {v(XB+4*hi+2*u,2)}, v9, s[16:19], {'s28' if hi else 0} offen offset:{32*u}", 'X')
    srd(e, 20, 6, 7, 0x10000)
    def vec(dst, base, tag):
        e(f"s_movk_i32 s11, {base}")
        for q in range(2): e.vmem(f"buffer_load_dwordx4 {v(dst+4*q,4)}, v8, s[20:23], s11 offen offset:{16*q}", tag)
    vec(G, WS_GA, 'G'); vec(S2, WS_S2, 'S'); vec(SB, WS_SB, 'S')
    if cfg.pf:
        lr = {'A': 2, 'B': 1}[cfg.pf]; W = 3584 >> lr; sh = 3 if lr == 2 else 4
        e("s_and_b32 s44, s2, 7"); e(f"s_lshr_b32 s44, s44, {3 - lr}"); e(f"s_mul_i32 s44, s44, {W}")
        e("s_lshr_b32 s45, s2, 3"); e("s_lshl_b32 s45, s45, 8"); e("v_add_u32 v10, s45, v0")
        e(f"v_and_b32 v14, {(1 << sh) - 1}, v10"); e(f"v_min_u32 v14, {W // 128 - 1}, v14"); e(f"v_lshrrev_b32 v10, {sh}, v10")
        if lr == 2:
            e("s_cmp_lt_u32 s2, 128"); e("s_cselect_b32 s40, s40, s42"); e("s_cselect_b32 s41, s41, s43"); e("v_and_b32 v10, 511, v10")
        e("v_mul_u32_u24 v10, 3584, v10"); e("v_lshl_add_u32 v10, v14, 7, v10"); e("v_add_u32 v10, s44, v10")
        for r in ((40,) if lr == 2 else (40, 42)):
            srd(e, 48, r, r + 1, 448*3584)
            e.vmem("buffer_load_dword v5, v10, s[48:51], 0 offen", 'PF')
    e(f"s_add_u32 s9, s9, {WS_X1}")
    srd_off(e, 24, 6, 7, "s9", 20*896)
    e("s_lshl_b32 s8, s8, 7"); e("s_add_u32 s3, s3, s8"); e(f"s_add_u32 s3, s3, {WS_H2}")
    srd_off(e, 32, 6, 7, "s3", 28672)
    e("v_lshlrev_b32 v11, 9, v3"); e("v_lshl_add_u32 v11, v4, 5, v11"); e("v_cndmask_b32 v11, v7, v11, vcc")
    e("v_lshlrev_b32 v12, 6, v4"); e("v_lshrrev_b32 v13, 6, v0"); e("v_lshl_add_u32 v13, v13, 4, v12")
    for h in range(NP):
        e.wait(vm=[('P', h)])
        if h == 0: tl(e, 2)
        if h == NP-1: tl(e, 3)
        for u in range(2):
            for d in range(4):
                r = P + 8*h + 4*u + d; A = ACC + 8*(d >> 1) + 4*u + 2*(d & 1)
                if h == 0:
                    e(f"v_lshlrev_b32 v{A}, 16, v{r}"); e(f"v_and_b32 v{A+1}, 0xffff0000, v{r}")
                else:
                    t = 14
                    e(f"v_lshlrev_b32 v{t}, 16, v{r}"); e(f"v_and_b32 v{t+1}, 0xffff0000, v{r}")
                    e(f"v_pk_add_f32 {v(A,2)}, {v(A,2)}, {v(t,2)}")
        if h == NP - 2:
            pass
    e.wait(vm=['X', 'G'])
    for d in range(8):
        e(f"v_lshlrev_b32 v{X+2*d}, 16, v{XB+d}"); e(f"v_and_b32 v{X+2*d+1}, 0xffff0000, v{XB+d}")
    for i in range(0, 16, 2): e(f"v_pk_fma_f32 {v(X+i,2)}, {v(ACC+i,2)}, {v(G+(i&7),2)}, {v(X+i,2)}")
    for hi in range(2):
        b = X + 8*hi; t = 20 + 4*hi
        e(f"v_pk_add_f32 {v(t,2)}, {v(b,2)}, {v(b+2,2)}"); e(f"v_pk_mul_f32 {v(t+2,2)}, {v(b,2)}, {v(b,2)}")
    for k in (1, 2, 3):
        for hi in range(2):
            b = X + 8*hi; t = 20 + 4*hi
            if k > 1: e(f"v_pk_add_f32 {v(t,2)}, {v(t,2)}, {v(b+2*k,2)}")
            e(f"v_pk_fma_f32 {v(t+2,2)}, {v(b+2*k,2)}, {v(b+2*k,2)}, {v(t+2,2)}")
    e("v_add_f32 v16, v20, v21"); e("v_add_f32 v17, v24, v25"); e("v_add_f32 v18, v22, v23"); e("v_add_f32 v19, v26, v27")
    for d in range(2): e(f"v_cvt_pk_bf16_f32 v{XB+d}, v{X+2*d}, v{X+2*d+1}")
    for ror in (4, 8):
        for i in range(4): e(f"v_add_f32_dpp v{16+i}, v{16+i}, v{16+i} row_ror:{ror} row_mask:0xf bank_mask:0xf")
    k = 2
    for sw in ('v_permlane16_swap_b32', 'v_permlane32_swap_b32'):
        for i in range(4): e(f"v_mov_b32 v{20+i}, v{16+i}")
        for d in range(k, k + 3): e(f"v_cvt_pk_bf16_f32 v{XB+d}, v{X+2*d}, v{X+2*d+1}")
        k += 3
        for i in range(4): e(f"{sw} v{16+i}, v{20+i}")
        e("v_pk_add_f32 v[16:17], v[16:17], v[20:21]"); e("v_pk_add_f32 v[18:19], v[18:19], v[22:23]")
    e("ds_write_b128 v13, v[16:19]")
    for hi in range(2):
        for u in range(2): e.vmem(f"buffer_store_dwordx2 {v(XB+4*hi+2*u,2)}, v9, s[24:27], {'s28' if hi else 0} offen offset:{32*u}{cfg.sflag}", 'ST')
    e("s_waitcnt lgkmcnt(0)")
    e("s_barrier")
    tl(e, 4)
    for i in range(4): e(f"ds_read_b128 {v(16+4*i,4)}, v12 offset:{16*i}")
    e(f"s_mov_b32 s30, {hex(f2u(1/448))}"); e("s_mov_b32 s31, s30")
    e("s_waitcnt lgkmcnt(0)")
    for a_, b_ in ((16, 20), (18, 22), (24, 28), (26, 30), (16, 24), (18, 26)): e(f"v_pk_add_f32 {v(a_,2)}, {v(a_,2)}, {v(b_,2)}")
    e("v_pk_mul_f32 v[16:17], v[16:17], s[30:31]"); e("v_pk_mul_f32 v[18:19], v[18:19], s[30:31]")
    for i in range(2): e(f"v_fma_f32 v{18+i}, -v{16+i}, v{16+i}, v{18+i}")
    for i in range(2): e(f"v_max_f32 v{18+i}, 0, v{18+i}")
    for i in range(2): e(f"v_add_f32 v{18+i}, {hex(f2u(1e-5))}, v{18+i}")
    for i in range(2): e(f"v_rsq_f32 v{18+i}, v{18+i}")
    e.wait(vm=['S'])
    for i in range(16): e(f"v_sub_f32 v{X+i}, v{X+i}, v{16+(i>>3)}")
    for i in range(16): e(f"v_mul_f32 v{X+i}, v{X+i}, v{18+(i>>3)}")
    for i in range(0, 16, 2): e(f"v_pk_fma_f32 {v(X+i,2)}, {v(X+i,2)}, {v(S2+(i&7),2)}, {v(SB+(i&7),2)}")
    for hi in range(2):
        for d in range(4): e(f"v_cvt_pk_bf16_f32 v{P+4*hi+d}, v{X+8*hi+2*d}, v{X+8*hi+2*d+1}")
        e(f"buffer_store_dwordx4 {v(P+4*hi,4)}, v11, s[32:35], 0 offen offset:{16*hi}{cfg.sflag}")
    tl(e, 5)
    tl_end(e, 2, 6, 7, 6)
    e(f"K2A_END:")
    e("s_endpgm")
    return e
NAME = 'k2a_kernel'
DESC = (144, 96, 144)
LAUNCH = f"grid=({GRID},1,1) block=(256,1,1) lds=512"
```

```python
from common import *

def run(e, f):
    if callable(f): f()
    elif isinstance(f, (list, tuple)):
        for x in f: run(e, x)
    else: e(f)

class Sched:
    def __init__(self, n, budget=2, wrap=False):
        self.n, self.B, self.wrap = n, budget, wrap
        self.load = [0.0] * n
        self.ops = [[] for _ in range(n)]
        self.seq = 0
    def put(self, g, op, cost=1, tag=None, first=False):
        gg = g % self.n if self.wrap else g
        assert 0 <= gg < self.n, g
        self.load[gg] += cost
        self.seq += 1
        self.ops[gg].append((-1 if first else self.seq, op, tag, g))
        return g
    def reserve(self, g, cost=1):
        self.load[g % self.n] += cost
    def place(self, op, cost, lo, hi, ideal, tag=None):
        ideal = min(max(ideal, lo), hi)
        cand = sorted(range(lo, hi + 1), key=lambda g: (abs(g - ideal), g))
        for g in cand:
            if self.load[g % self.n] + cost <= self.B: return self.put(g, op, cost, tag)
        g = min(cand, key=lambda g: (self.load[g % self.n], abs(g - ideal)))
        return self.put(g, op, cost, tag)
    def chain(self, items, lo, hi, tag=None, slack=6):
        tot = sum(c for _, c, _ in items); acc = 0; prev = lo; out = []
        n = len(items)
        for k, (op, c, d) in enumerate(items):
            ideal = lo + int((hi - lo) * acc / tot)
            l = max(prev + d, lo) if k else lo
            h = min(hi, max(l, ideal + slack))
            g = self.place(op, c, l, h, ideal, tag)
            prev = g; acc += c; out.append(g)
        return out
    def asap(self, items, lo, tag=None, budget=None, hi=None):
        B = budget or self.B; prev = lo; out = []; hi = hi if hi is not None else self.n - 1
        for k, it in enumerate(items):
            op, c, d = it[:3]
            g = max(prev + (d if k else 0), it[3] if len(it) > 3 else 0)
            while g < hi and self.load[g] + c > B and self.load[g] > 0: g += 1
            g = min(g, hi)
            self.put(g, op, c, tag); prev = g; out.append(g)
        return out
    def gap(self, g):
        return [(op, tag, gg) for _, op, tag, gg in sorted(self.ops[g], key=lambda x: x[0])]
    def report(self):
        over = [(g, l) for g, l in enumerate(self.load) if l > self.B]
        return f"total slots {sum(self.load):.0f}/{self.n*self.B}, over-budget gaps {over}"
```

```python
from build2 import *
import k0b, k1b, red2, mlp3, down
ALL = [k0b, k1b, red2, mlp3, down]
C = {'k0_kernel': cfg(k0b.Cfg, pf_all=False, pf_k=False)}
if __name__ == '__main__':
    build(ALL, 'best_v3.s', C)
    check('best_v3.s')
    TL.on = True
    build(ALL, 'best_v3_tl.s', C)
    check('best_v3_tl.s')
```

```python
from k1c_head import *
import k1c_head
class Cfg(k1c_head.Cfg):
    x0 = 8
    w0 = 0
    wstep = 2
    hb = 105
    vpf = None
    cb = 3
    smend = 104
    gb = 2
    b0 = 348
    cbq = 3

class Stream:
    def __init__(self, e, n):
        self.e, self.mf, self.S, self.w, self.pre = e, [], Sched(n, 2), {}, []
    def add(self, t): self.mf.append(t)
    def wait(self, m, lg=(), vm=()):
        if m not in self.w:
            self.w[m] = ([], [])
            if m: self.S.reserve(m - 1)
        self.w[m][0].extend(lg); self.w[m][1].extend(vm)
    def bar(self, g, lg=(), vm=(), lg_all=False):
        e = self.e
        return self.S.put(g, lambda: (e.wait(lg=lg, vm=vm, lg_all=lg_all), e("s_barrier")), 2)
    def gemm(self, per, lead=2):
        e, m0 = self.e, len(self.mf)
        def reads(n, k):
            P = per[n]
            if k == 0: run(e, P.get('rpre', []))
            cb, ks = P['fr'][k]; vr, imm = P['addr'](cb)
            for u in range(2):
                e.ds(f"ds_read_b64_tr_b16 {wfragh(2*n + k, u)}, v{vr} offset:{imm + (32*ks + 16*u)*P['rs']}", ('W', n))
        for n, P in enumerate(per):
            for k in range(2):
                g = m0 + 8*(n - lead) + 2*k
                if g < 0: self.pre.append(lambda n=n, k=k: reads(n, k))
                else: self.S.put(g, lambda n=n, k=k: reads(n, k), 2)
            self.wait(m0 + 8*n, lg=[('W', n)] + P.get('lg', []))
            for i in range(8):
                qb, k = i >> 1, i & 1
                cb, ks = P['fr'][k]
                d = P['acc'](cb, qb)
                self.add(f"{MF} {d}, {wfrag(2*n + k)}, {P['b'](ks, qb)}, {0 if P['first'] and not ks else d}")
    def emit(self, marks={}):
        e = self.e
        run(e, self.pre)
        for m, t in enumerate(self.mf):
            if m in marks: run(e, marks[m])
            if m in self.w: e.wait(lg=self.w[m][0], vm=self.w[m][1])
            e(t)
            for op, tag, gg in self.S.gap(m): run(e, op)

def red4(regs, op):
    A, B, C, D = regs
    return [(f"v_permlane16_swap_b32 v{A}, v{B}", 1, 0), (f"v_permlane16_swap_b32 v{C}, v{D}", 1, 0), (f"{op} v{A}, v{A}, v{B}", 1, 0), (f"{op} v{C}, v{C}, v{D}", 1, 0),
            ("s_nop 1", 1, 0), (f"v_permlane32_swap_b32 v{A}, v{C}", 1, 0), (f"{op} v{A}, v{A}, v{C}", 1, 0)]
XB = PXB + 16384
def xaddr_ops(wr, rd):
    return [f"s_lshl_b32 s{sT1}, s{sW}, 8", f"s_add_u32 s{sT1}, s{sT1}, {XB}", f"v_and_b32 v{rd}, 15, v2", f"v_lshl_add_u32 v{rd}, v{rd}, 4, s{sT1}",
            f"v_lshrrev_b32 v{wr}, 4, v2", f"v_lshl_add_u32 v{wr}, v{wr}, 2, v{rd}"]

def gen(cfg=Cfg):
    e = Em()
    e(f"s_cmp_ge_u32 s2, {GRID}")
    e("s_cbranch_scc1 K1_END")
    tl(e, 0)
    e(f"s_load_dwordx2 s[56:57], s[0:1], {ARG['ws']}")
    e(f"s_load_dwordx8 s[48:55], s[0:1], {ARG['k']}")
    e("v_lshrrev_b32 v1, 6, v0"); e("v_and_b32 v2, 63, v0")
    e("s_and_b32 s4, s2, 7"); e("s_lshr_b32 s6, s2, 3")
    e(f"v_readfirstlane_b32 s{sW}, v1")
    vX, vM, vWD, vHW, vHR, vMA = 64, 128, 48, 53, 54, 55
    WIN = [56, vWA, 60]
    e(f"v_lshlrev_b32 v{vHR}, 4, v2")
    e(f"v_lshlrev_b32 v{vHW}, 4, v0")
    e(f"s_lshl_b32 s{sWOFF}, s{sW}, 13")
    e(f"s_lshl2_add_u32 s{sXO}, s6, s{sW}"); e(f"s_mul_i32 s{sXO}, s{sXO}, 14336"); e(f"s_add_u32 s{sXO}, s{sXO}, {WS_XHAT}")
    e(f"s_lshl_b32 s{sT1}, s{sW}, 10"); e(f"s_add_u32 m0, s{sT1}, {MODB}")
    e("v_lshrrev_b32 v1, 3, v2"); e("v_and_b32 v3, 6, v1"); e("v_and_b32 v47, 7, v2"); e("v_xor_b32 v3, v3, v47")
    e("v_lshlrev_b32 v47, 4, v3")
    e(f"v_lshl_add_u32 v{vWD}, v1, 13, v47")
    for q in range(1, 4): e(f"v_add_u32 v{vWD+q}, {q*(65536-1024)}, v{vWD}")
    e(f"s_lshl2_add_u32 s{sT2}, s4, s{sW}"); e(f"s_lshl_b32 s{sT2}, s{sT2}, 8")
    e("s_waitcnt lgkmcnt(0)")
    srd(e, S_X, 56, 57, WS_XHAT + ACT_BYTES)
    e.vmem(f"buffer_load_dwordx4 v{vHR}, {s(S_X,4)}, s{sT1} offen lds", 'M')
    def xload(t):
        if t % 4 == 0 and t: e(f"s_add_u32 s{sXO}, s{sXO}, 4096")
        e.vmem(f"buffer_load_dwordx4 {v(vX + 4*t, 4)}, v{vHR}, {s(S_X,4)}, s{sXO} offen offset:{1024*(t % 4)}", ('X', t))
    for t in range(cfg.x0): xload(t)
    srd_off(e, S_WQ, 52, 53, f"s{sT2}", 447*8192 + 256)
    QSL = [2, 3, 4, 2, 3, 4, 1, 0, 2, 3, 4, 1, 2, 3]
    def wq_dma(U):
        return unit_dma(e, vWD, S_WQ, lambda h: f"s_mov_b32 s{sT0}, {(U >> 1)*524288 + (U & 1)*128 + h*262144}", QSL[U]*SLOT, ('WU', U))
    pend = wq_dma(0) + wq_dma(1) + wq_dma(2)
    def wissue(k):
        while k > 0 and pend:
            it = pend.pop(0); flat(e, [it])
            if not isinstance(it[0], str): k -= 1
    wissue(cfg.w0)
    e("v_lshrrev_b32 v1, 2, v2"); e("v_and_b32 v3, 3, v2"); e("v_lshlrev_b32 v3, 3, v3"); e("v_lshl_add_u32 v3, v1, 7, v3")
    e(f"v_add_u32 v3, s{sWOFF}, v3"); e("v_bfe_u32 v1, v2, 3, 2")
    for c in range(4):
        e(f"v_xor_b32 v47, {c}, v1"); e(f"v_lshl_add_u32 v{WIN[0]+c}, v47, 5, v3")
        e(f"v_add_u32 v{WIN[1]+c}, {2*SLOT}, v{WIN[0]+c}"); e(f"v_add_u32 v{WIN[2]+c}, {4*SLOT}, v{WIN[0]+c}")
    e(f"v_lshrrev_b32 v{vMA}, 4, v2"); e(f"v_lshlrev_b32 v{vMA}, 6, v{vMA}"); e(f"v_add_u32 v{vMA}, {MODB}, v{vMA}")
    e(f"s_lshl_b32 s{sT2}, s4, 20")
    srd_off(e, S_K, 48, 49, f"s{sT2}", 1 << 20)
    srd_off(e, S_V, 50, 51, f"s{sT2}", 1 << 20)
    tile_offs(e)
    e(f"s_mov_b32 s{sTHR}, {hex(f2u(cfg.thr))}")
    run(e, loop_addr_ops(cfg))
    e.wait(vm=['M'])
    e("s_barrier")
    tl(e, 1)
    def mreads(t):
        for q in range(4): e.ds(f"ds_read_b128 {v(vM + 16*(t % 2) + 4*q, 4)}, v{vMA} offset:{t*256 + 16*q}", ('M', t))
    mreads(0)
    for t in range(14):
        if t + 1 < 14: mreads(t + 1)
        e.wait(lg=[('M', t)], vm=[('X', t)])
        b, x = vM + 16*(t % 2), vX + 4*t
        for j in range(8):
            sel = " op_sel:[1,0,0]" if j & 1 else ""
            e(f"v_fma_mix_f32 v{b+8+j}, v{x + j//2}, v{b+j}, v{b+8+j}{sel} op_sel_hi:[1,0,0]")
        for p_ in range(4): e(f"v_cvt_pk_bf16_f32 v{x+p_}, v{b+8+2*p_}, v{b+9+2*p_}")
        e.ds(f"ds_write_b128 v{vHW}, {v(x, 4)} offset:{t*4096}", 'HW')
        if t + cfg.x0 < 14: xload(t + cfg.x0)
        wissue(cfg.wstep)
    wissue(100)
    e.wait(lg_all=True)
    e("s_barrier")
    tl(e, 2)
    G = Stream(e, 512); S = G.S
    HB = [128, 160, 0, 32, 64, 96, 192]
    def hread(n): e.ds(f"ds_read_b128 {a(HB[n >> 3] + 4*(n & 7), 4)}, v{vHR} offset:{1024*n}", ('H', n >> 3))
    for n in range(8): hread(n)
    per = []
    for U in range(14):
        kp, ch = U >> 1, U & 1
        for cb in range(4):
            d = dict(fr=[(cb, 0), (cb, 1)], rs=128, first=(kp == 0), addr=lambda cb, sl=QSL[U]: (WIN[sl >> 1] + cb, (sl & 1)*SLOT),
                     acc=lambda cb, qb, ch=ch: v(vO + (((2*ch + (cb >> 1))*4 + qb)*2 + (cb & 1))*4, 4),
                     b=lambda ks, qb, kp=kp: a(HB[kp] + 4*(4*ks + qb), 4))
            if cb == 0:
                d['rpre'] = [lambda U=U: e.wait(vm=[('WU', U)])]
                d['lg'] = [('H', kp)]
            per.append(d)
    G.gemm(per)
    G.bar(cfg.hb, lg=[('H', 6)])
    free = {2: 25, 3: 57, 4: 89, 0: cfg.hb + 1, 1: cfg.hb + 1}
    last = 0
    seq = [('W', U) for U in range(3, 12)] + [('K0', 0), ('W', 12), ('W', 13), ('K1', 1), ('V', 2)]
    for kind, U in seq:
        if kind == 'W': it, sl = wq_dma(U), QSL[U]
        elif kind == 'V': it, sl = dma_items(e, cfg, S_V, 0, 2*SLOT, 'V', False), 2
        else: it, sl = dma_items(e, cfg, S_K, U, U*SLOT, kind, False), U
        last = S.asap(it, max(last, free[sl]))[-1] + 1
        if kind == 'W': free[sl] = 32*U + 25
    hg = S.asap([(lambda n=n: hread(n), 1, 0) for n in range(8, 56)], 1)
    assert hg[-1] < cfg.hb - 2, hg[-1]
    for kp in range(1, 7): assert hg[8*kp - 1] < 64*kp - 4
    if cfg.vpf:
        S.put(cfg.vpf, [f"v_lshlrev_b32 v1, 7, v2", lambda: e.vmem(f"buffer_load_dword v52, v1, {s(S_V,4)}, s{sR[0]} offen", 'PF')], 2)
    vQW, vQR, vMW, vMR = 53, 55, 1, 3
    S.asap([(f"v_add_u32 v{vQW}, s{sWOFF}, v{vHR}", 1, 0), (f"v_add_u32 v{vQW}, {3*SLOT}, v{vQW}", 1, 0), (f"v_xor_b32 v{vQR}, 0x2000, v{vQW}", 1, 0)]
           + [(o, 1, 0) for o in xaddr_ops(vMW, vMR)] + [(f"v_xor_b32 v47, 0x100, v{vMR}", 1, 0)], 330)
    def qoff(n): return (1 - (n >> 3))*SLOT + (n & 7)*1024
    def qconv(n0, lo, wlo=0):
        it = []
        for n in (n0, n0 + 1): it += [(f"v_cvt_pk_bf16_f32 v{vO+4*n+p_}, v{vO+8*n+2*p_}, v{vO+8*n+2*p_+1}", 1, 0, lo) for p_ in range(4)]
        for n in (n0, n0 + 1): it += [(f"v_permlane16_swap_b32 v{vO+4*n+p_}, v{vO+4*n+2+p_}", 1, 0) for p_ in range(2)]
        for n in (n0, n0 + 1): it.append((lambda n=n: e.ds(f"ds_write_b128 v{vQW}, {v(vO+4*n,4)} offset:{qoff(n)}", ('QW', n >> 3)), 2, 0, wlo))
        return it
    B0 = cfg.b0
    G.bar(B0, vm=['K0'])
    kord = [0, 1, 8, 9, 4, 5, 12, 13, 2, 3, 6, 7, 10, 11, 14, 15]
    c0 = S.asap(qconv(0, 399) + qconv(2, 403) + qconv(4, 415) + qconv(6, 419), 399, budget=cfg.cbq)
    kg = S.asap([(lambda f=f: e.ds(k_read(f, 0), ('F', f)), 1.5, 0) for f in kord], B0 + 1)
    B1 = c0[-1] + 2
    G.bar(B1, lg=[('QW', 0)])
    def qread(n, own): return (lambda: e.ds(f"ds_read_b128 {a(aQ + (0 if own else 64) + 4*n, 4)}, v{vQW if own else vQR} offset:{qoff(n)}", ('QR', own, n >> 3)), 1.5, 0)
    r0 = S.asap([qread(n, 0) for n in range(8)], B1 + 1, budget=3)
    c1 = S.asap(qconv(8, 431, 441) + qconv(10, 435) + qconv(12, 447) + qconv(14, 451), max(431, c0[-1]), budget=cfg.cbq)
    r1 = S.asap([qread(n, 1) for n in range(8)], r0[-1], budget=3)
    B2 = max(c1[-1], r1[-1]) + 2
    G.bar(B2, lg=[('QW', 1), ('QR', 1, 0), ('QR', 0, 0)])
    r2 = S.asap([qread(n, 0) for n in range(8, 16)] + [qread(n, 1) for n in range(8, 16)], B2 + 1, budget=3)
    print('B1', B1, 'B2', B2, 'kg', kg[-1], 'r0', r0[-1], 'r1', r1[-1], 'r2', r2[7], r2[-1])
    assert kg[-1] < 444 and r0[-1] < 462 and r2[7] < 487
    assert c1[-1] < 471 and r2[7] < 477 and r2[-1] < 490
    qk0 = []
    for gi, (grp, kb) in enumerate([(0, 0), (0, 1), (2, 0), (1, 0), (3, 0), (2, 1), (1, 1), (3, 1)]):
        G.wait(448 + 8*gi, lg=[('F', 8*kb + 2*grp + k) for k in range(2)] + ([('QR', 0, grp - 2)] if grp >= 2 else []) + ([('QR', 1, 1)] if gi == 6 else []))
        for qb in range(4):
            for k in range(2):
                ks = 2*grp + k; d = v(Sr(kb, qb), 4); n = 4*ks + qb
                G.add(f"{MF} {d}, {frag(8*kb + ks)}, {v(vO + 4*n, 4) if grp < 2 and gi < 6 else a(aQ + 4*n, 4)}, {d if ks else 0}")
                qk0.append((kb, f"{MF} {d}, {frag(8*kb + ks)}, {a(aQ + 4*n, 4)}, {d if ks else 0}"))
    T = vP + 16
    mx = [("s_nop 2", 1, 0)]
    for qb in range(4):
        a_ = Sr(0, qb)
        mx += [(f"v_max3_f32 v{vL+qb}, v{a_}, v{a_+1}, v{a_+2}", 1, 0, 486 + 2*qb), (f"v_max_f32 v{vL+qb}, v{vL+qb}, v{a_+3}", 1, 0)]
    mx += [("s_nop 0", 1, 0)] + red4([vL + i for i in range(4)], 'v_max_f32') + [(lambda: e.ds(f"ds_write_b32 v{vMW}, v{vL}", 'X'), 1, 0)]
    mg = S.asap(mx, 486, budget=3)
    Bm = mg[-1] + 1
    G.bar(Bm, vm=['K1'], lg_all=True)
    S.put(Bm, "K1_J:", 0)
    S1 = build_iter(e, cfg, 1)
    pre = [(op, tag) for g in range(128) for op, tag, gg in S1.gap(g)]
    post = [(lambda: e.ds(f"ds_read_b128 {v(T,4)}, v{vMR}", 'X'), 1), (lambda: e.ds(f"ds_read_b128 {v(T+4,4)}, v47", 'X'), 1)]
    post += [(op, 1.5) for op, tag in pre if tag == 'kr_next']
    post += [(f"v_mov_b32 v{vL+i}, 0", 1) for i in range(4)]
    post += [(lambda: e.wait(lg=['X']), 1)]
    ngm = [(f"v_min_f32 v{vNEGM+i}, -v{T + (i >> 2)}, -v{T + 4 + (i >> 2)}", 1) for i in (0, 1, 4, 5, 8, 9, 12, 13, 2, 3, 6, 7, 10, 11, 14, 15)]
    sma = [op for op, tag in pre if tag == 'sma']
    kd = [op for op, tag in pre if tag == 'kdma']
    def sub(i): return (f"v_pk_add_f32 {v(vS+2*i,2)}, {v(vS+2*i,2)}, {v(vNEGM + 4*((i >> 1) & 3), 2)}", 1)
    post += ngm[:2] + [sub(0), sub(1)]
    side = ngm[2:4] + [sub(2), sub(3)] + ngm[4:6] + [sub(4), sub(5)] + ngm[6:8] + [sub(6), sub(7)] + [('STOP', 0)] + [sub(i) for i in range(8, 16)] + ngm[8:]
    grp = []
    for op in sma:
        if isinstance(op, str) and op.startswith('v_exp'): grp.append([op])
        else: grp[-1].append(op)
    for i, g_ in enumerate(grp):
        post.append((g_[0], 2))
        post += side[:1 + (i >= 12)]; side = side[1 + (i >= 12):]
        if i: post += [(o, 1) for o in grp[i-1][1:]]
        if i % 2 == 0 and kd: post.append((kd.pop(0), 1))
    assert not kd and not side
    post += [("s_nop 0", 1)] + [(o, 1) for o in grp[-1][1:]]
    g = Bm
    while post[0][0] != 'STOP':
        while g < 512 and S.load[g] + post[0][1] > 3: g += 1
        if g == 512: break
        op, c = post.pop(0); S.put(g, op, c)
    print('Bm', Bm, 'left', len(post), 'qproj', S.report())
    G.emit({448: lambda: tl(e, 3)})
    for op, c in post:
        if op != 'STOP': run(e, op)
    if cfg.pf:
        e(f"s_load_dwordx4 s[88:91], s[0:1], {ARG['wg']}")
        e(f"s_load_dwordx2 s[92:93], s[0:1], {ARG['wd']}")
    e.wait(lg_all=True)
    sv = (list(e.lines), list(e.vm)); emit_iter(e, cfg, 1); e.lines, e.vm = sv
    tl(e, 4)
    extra = {}
    if cfg.pf:
        ops = [f"s_lshl2_add_u32 s{sT0}, s6, s{sW}", f"s_mul_i32 s{sT0}, s{sT0}, 3584", f"s_mul_i32 s{sT1}, s4, {512*896}", f"s_add_u32 s{sT0}, s{sT0}, s{sT1}",
               ["v_lshlrev_b32 v1, 6, v2", f"v_min_u32 v1, {55*64}, v1"], lambda: srd(e, 80, 54, 55, 4096*896),
               lambda: e.vmem(f"buffer_load_dword v47, v1, s[80:83], s{sT0} offen", 'V'),
               f"s_lshl2_add_u32 s{sT0}, s2, s{sW}", f"s_mul_i32 s{sT0}, s{sT0}, {25*64}", f"v_min_u32 v1, {24*64}, v1", f"v_add_u32 v1, s{sT0}, v1"]
        for r in (88, 90, 92):
            ops += [lambda r=r: srd(e, 80, r, r + 1, 448*3584), lambda: e.vmem(f"buffer_load_dword v47, v1, s[80:83], 0 offen", 'V')]
        for i, o in enumerate(ops): extra[25 + 2*i] = [o]
    emit_iter(e, cfg, 0, zero=True, extra=extra)
    while e.vm.count('V') > 8: e.vm.remove('V')
    NTRIP = 14
    e(f"s_mov_b32 s{sCNT}, {NTRIP}")
    e(".p2align 3")
    e("K1_LOOP:")
    st0 = (list(e.lg), list(e.vm))
    l0 = len(e.lines)
    emit_iter(e, cfg, 1)
    S = emit_iter(e, cfg, 0, loop=True)
    e("s_cbranch_scc1 K1_LOOP")
    l1 = len(e.lines)
    assert st0 == (list(e.lg), list(e.vm)), (st0, e.lg, e.vm)
    vOA, vOB, vWB, vGR, vI = vDK, 56, 59, vDV, vNEGM
    OWIN = [vKA, vWA, vKA + 4]
    OSL = {0: 0, 1: 1, 2: 4}
    def wo_dma(U):
        ps, i = U >> 3, U & 7
        so = lambda h: f"s_add_u32 s{sT0}, s{sROT + (i >> 1)}, {((i & 1)*64 + h*32)*896}"
        if not ps: return unit_dma(e, vOA, S_WO, so, OSL[U]*SLOT, ('WU', U))
        it = []
        for q in range(6):
            if q % 3 == 0: it += [(so(q // 3), 1, 0), (f"s_add_u32 m0, s{sWOFF}, {OSL[U]*SLOT + 3072*(q//3)}", 1, 0)]
            it.append((lambda q=q: e.vmem(f"buffer_load_dwordx4 v{vOB + q % 3}, {s(S_WO,4)}, s{sT0} offen offset:{1024*(q % 3)} lds", ('WU', U)), 2, 1 if q % 3 == 0 else 0))
        return it
    def spread(extra, items, gaps):
        gi = 0
        for op, c, d in items:
            if isinstance(op, str): extra.setdefault(gaps[gi] - 2, []).append(op)
            else: extra.setdefault(gaps[gi], []).append(op); gi += 1
    setup = [f"s_mul_i32 s{sT1}, s4, {512*896}", lambda: srd_off(e, S_WO, 54, 55, f"s{sT1}", 512*896)]
    for j in range(4): setup += [[f"s_add_u32 s{sT1}, s{sW}, {j}", f"s_and_b32 s{sT1}, s{sT1}, 3"], [f"s_mul_i32 s{sROT+j}, s{sT1}, {128*896}", f"s_lshl_b32 s{44+j}, s{sT1}, 13"]]
    setup += ["v_lshrrev_b32 v1, 3, v2", "v_and_b32 v3, 6, v1", "v_and_b32 v47, 7, v2", "v_xor_b32 v3, v3, v47", "v_mul_u32_u24 v1, 896, v1",
              "v_lshl_add_u32 v1, v3, 4, v1", f"s_lshl_b32 s{sT1}, s{sW}, 7", f"v_add_u32 v{vOA}, s{sT1}, v1"]
    setup += [f"v_add_u32 v{vOA+q}, {q*(7168-1024)}, v{vOA}" for q in range(1, 4)]
    setup += [[f"s_lshl_b32 s{sT1}, s6, 6", f"s_add_u32 s{sT1}, s{sT1}, s4"], [f"s_mul_i32 s{sT1}, s{sT1}, 7168", f"s_add_u32 s{sT1}, s{sT1}, {WS_PART}"],
              lambda: srd_off(e, S_P, 56, 57, f"s{sT1}", 7*57344 + 7168),
              "v_bfe_u32 v1, v2, 2, 2", "v_mul_u32_u24 v1, 57344, v1", "v_lshrrev_b32 v3, 4, v2", "v_lshl_add_u32 v1, v3, 6, v1",
              "v_and_b32 v3, 3, v2", f"v_lshl_add_u32 v{vSTO}, v3, 4, v1"]
    vLW, vLR = 1, 3
    extra = {}
    for i, o in enumerate(setup): extra[21 + 2*i] = [o]
    assert 21 + 2*len(setup) < 88
    for g, o in zip((93, 101, 109, 111, 117, 119, 125), xaddr_ops(vLW, vLR) + [f"v_and_b32 v{vLR}, 0xfffffcff, v{vLR}"]): extra[g] = [o]
    for g, j in zip((55, 71, 85, 123), range(4)): extra.setdefault(g, []).append(f"s_add_u32 s{44+j}, s{44+j}, {2*SLOT}")
    spread(extra, wo_dma(0), list(range(91, 128, 4))[:8])
    emit_iter(e, cfg, 1, skip=('kdma',), extra=extra)
    E = Stream(e, 640); S = E.S
    S0 = build_iter(e, cfg, 0)
    cost = dict(kr=cfg.b128c, pr=cfg.b128c, vr=1)
    E.bar(23, vm=['V'], lg=['PW'] + [('F', f) for f in range(8, 16)])
    for g in range(128):
        for op, tag, gg in S0.gap(g):
            if tag in cost: S.put(g, op, cost[tag])
            elif tag == 'smb': S.put(g, op, 1.5 if not isinstance(op, str) else (2 if 'exp' in op else 1))
    for m, lg in S0.waits.items(): E.wait(m, lg=lg)
    for m in range(128): E.add(qk_mf(m, cfg) if m < 64 else pv_mf(m, cfg, 0))
    for m in range(64, 128): E.add(pv_mf(m, cfg, 1, px=aPX2))
    BB = 87
    E.bar(BB, vm=['V'], lg=[('F', 6), ('F', 7)])
    for f in range(16):
        for u in range(2): S.put(98 + 4*f, lambda f=f, u=u: e.ds(v_read(f, u, 1), ('F', f)), 1)
    for k in range(4): E.wait(128 + 16*k, lg=[('F', f) for f in range(4*k, 4*k + 4)] + (['PX'] if k == 0 else []))
    vA = [64, 192]; vOUT = 240
    per = []; ustart = []
    for U in range(16):
        ps, i = U >> 3, U & 7
        ustart.append(192 + 8*len(per))
        for n in range(3 if ps else 4):
            fr = [(2*(n & 1), n >> 1), (2*(n & 1) + 1, n >> 1)] if U < 2 else [(n, 0), (n, 1)]
            d = dict(fr=fr, rs=96 if ps else 128, first=(i == 0),
                     addr=lambda cb, U=U, ps=ps: ((vWB + (OSL[U] >> 1), (OSL[U] & 1)*SLOT + 32*cb) if ps else (OWIN[OSL[U] >> 1] + cb, (OSL[U] & 1)*SLOT)),
                     acc=lambda cb, qb, ps=ps: v(vA[ps] + 16*cb + 4*qb, 4),
                     b=lambda ks, qb, i=i: (v(vO + 16*(2*i + ks) + 4*qb, 4) if i < 2 else a(4*((2*i + ks - 4)*4 + qb), 4)))
            if n == 0:
                d['rpre'] = [lambda U=U: e.wait(vm=[('WU', U)])]
                if i >= 2 and not ps: d['lg'] = [('G', i - 2)]
            per.append(d)
    ustart.append(192 + 8*len(per))
    E.gemm(per)
    it = []; idx = []
    for i in range(32):
        ex, post = sm_ops(i, 1)
        it.append((ex, 2, 0)); it += [(o, 1, 1 if k == 0 else 0) for k, o in enumerate(post)]; idx.append(len(it) - 1)
    vd = S.chain(dma_items(e, cfg, S_V, 1, 3*SLOT, 'V', False) + wo_dma(1), 24, 86)
    sg = S.chain(it, 12, cfg.smend, slack=3)
    pw = []
    for qb in range(4):
        for kb in range(2): pw.append((sg[idx[16*kb + 4*qb + 3]] + 1, kb, qb))
    pw.sort()
    pg = S.asap([(lambda kb=kb, qb=qb: e.ds(f"ds_write_b64 v{vPW}, {v(Pr(1, qb) + 2*kb, 2)} offset:{1024*qb + 512*kb}", 'PW'), 1.5, 1, lo) for lo, kb, qb in pw], BB + 1, budget=2.5)
    lgp = S.asap([("s_nop 0", 1, 0)] + red4([vL + i for i in range(4)], 'v_add_f32') + [(lambda: e.ds(f"ds_write_b32 v{vLW}, v{vL}", 'PW'), 1, 0)], sg[-1] + 1, budget=3)
    B3 = max(lgp[-1], pg[-1], 112) + 1
    E.bar(B3, lg=['PW'])
    T = vS
    rd = [(lambda j=j: e.ds(f"ds_read_b128 {v(T + 4*j, 4)}, v{vLR} offset:{256*j}", 'X'), 1.5, 0) for j in range(4)]
    rd += [(lambda qb=qb: e.ds(f"ds_read2st64_b64 {a(aPX2 + 4*qb, 4)}, v{vPR} offset0:{2*qb} offset1:{2*qb+1}", 'PX'), 1.5, 0) for qb in range(4)]
    rg = S.asap(rd, B3 + 1, budget=3)
    B35 = rg[-1] + 6
    E.bar(B35, lg=['PX', 'X'])
    u2 = S.asap(wo_dma(2), B35 + 1)
    ck = [([f"s_cmp_lt_u32 s{sW}, 2", "s_cselect_b64 vcc, -1, 0"], 2, 0), (lambda: e.wait(lg=['X']), 1, 0, rg[3] + 6)]
    ck += [(f"v_pk_add_f32 {v(T+b_,2)}, {v(T+b_,2)}, {v(T+b_+4,2)}", 1, 0) for b_ in (0, 2, 8, 10)]
    ck += [(f"v_cndmask_b32 v{vI+2*q}, v{T+8+q}, v{T+q}, vcc", 1, 0) for q in range(4)]
    ck += [(f"v_max3_f32 v{T}, v{T}, v{T+1}, v{T+2}", 1, 0), (f"v_max3_f32 v{T+8}, v{T+8}, v{T+9}, v{T+10}", 1, 0), (f"v_max3_f32 v{T}, v{T}, v{T+3}, v{T+11}", 1, 0),
           (f"v_max_f32 v{T}, v{T}, v{T+8}", 1, 0), (f"v_cmp_lt_f32 vcc, s{sTHR}, v{T}", 1, 0)]
    ck += [(f"v_rcp_f32 v{vI+2*q}, v{vI+2*q}", 1, 0) for q in range(4)] + [("s_cbranch_vccnz K1_FB", 1, 0)]
    ck += [(f"v_lshl_add_u32 v{vGR+j}, v2, 4, s{44+j}", 1, 0) for j in range(4)]
    cg = S.asap(ck, rg[-1], budget=3)
    xs = [(f"v_subrev_u32 v{OWIN[0]+c}, {2*SLOT}, v{vWA+c}", 1, 0) for c in range(4)] + [(f"v_add_u32 v{OWIN[2]+c}, {2*SLOT}, v{vWA+c}", 1, 0) for c in range(4)]
    xg = S.asap(xs, 33)
    assert xg[-1] < 175
    free = {0: ustart[1] - 7, 1: ustart[2] - 7, 4: ustart[3] - 7}
    last = u2[-1] + 1
    def issue(U):
        nonlocal last
        sl = min(free, key=lambda k: free[k]); OSL[U] = sl
        last = S.asap(wo_dma(U), max(last, free[sl]))[-1] + 1
        free[sl] = ustart[U + 1] - 7
    issue(3); issue(4); issue(5)
    def conv(kk, qb):
        it = []; lo = 128 + 16*kk + 8 + 2*qb + 1 + 5
        sel = " op_sel_hi:[1,0]"
        srcs = [vO + 16*(2*kk + (h >> 1)) + 4*qb + 2*(h & 1) for h in range(4)]
        for r in srcs: it.append((f"v_pk_mul_f32 {v(r,2)}, {v(r,2)}, {v(vI + 2*qb, 2)}{sel}", 1, 0, lo))
        for h, r in enumerate(srcs): it.append((f"v_cvt_pk_bf16_f32 v{vO + 16*kk + 4*qb + h}, v{r}, v{r+1}", 1, 0))
        it.append((lambda: e.ds(f"ds_write_b128 v{vGR}, {v(vO + 16*kk + 4*qb, 4)} offset:{(kk >> 1)*SLOT + ((kk & 1)*4 + qb)*1024}", 'OW'), 2, 0))
        return it
    B4 = 177
    E.bar(B4)
    cv = S.asap(sum([conv(kk, qb) for kk in range(4) for qb in range(4)], []), cg[-1] + 1, budget=cfg.cb)
    for kk in range(4):
        for qb in range(4): assert cv[9*(4*kk + qb) + 7] < 192 + 16*kk + 2*qb - 1, (kk, qb, cv[9*(4*kk + qb) + 7])
    assert cv[9*8 + 8] > B4
    B5 = cv[-1] + 2
    E.bar(B5, lg=['OW'])
    def gread(n):
        j, kk, qb = 1 + (n >> 4), (n >> 2) & 3, n & 3
        e.ds(f"ds_read_b128 {a(4*n, 4)}, v{vGR+j} offset:{(kk >> 1)*SLOT + ((kk & 1)*4 + qb)*1024}", ('G', n >> 3))
    sb = [f"v_add_u32 v1, {64*q}, v2" for q in range(1)]
    sb = []
    for q in range(3):
        sb += [f"v_add_u32 v1, {64*q}, v2", "v_mul_u32_u24 v3, 10923, v1", "v_lshrrev_b32 v3, 16, v3", f"v_mul_u32_u24 v3, {896 - 96}, v3",
               f"v_lshl_add_u32 v3, v2, 4, v3", f"v_add_u32 v{vOB+q}, s{sT1}, v3"]
    sb = [f"s_mul_i32 s{sT1}, s{sW}, 96", f"s_add_u32 s{sT1}, s{sT1}, 512"] + sb
    sb += ["v_lshrrev_b32 v1, 2, v2", "v_mul_u32_u24 v1, 96, v1", "v_and_b32 v3, 3, v2", "v_lshl_add_u32 v1, v3, 3, v1", f"v_add_u32 v{vWB}, s{sWOFF}, v1",
           f"v_add_u32 v{vWB+1}, {2*SLOT}, v{vWB}", f"v_add_u32 v{vWB+2}, {4*SLOT}, v{vWB}",
           f"s_lshl_b32 s{sT2}, s{sW}, 10", f"s_add_u32 s{sT3}, s{sT2}, {4*57344}"]
    gr0 = S.asap([(lambda n=n: gread(n), 1.5, 0) for n in range(8)], B5 + 1, budget=3)
    assert gr0[-1] < ustart[2] - 2
    gr1 = S.asap([(lambda n=n: gread(n), 1, 0) for n in range(8, 48)], gr0[-1], budget=cfg.gb)
    print('cv', cv[::36], cv[-1], 'B5', B5, 'gr0', gr0, 'gr1', gr1, 'u2', u2[-1], 'cg', cg[0], cg[-1], 'sg', sg[-1], 'pg', pg, 'last', last)
    for i in range(1, 6): assert gr1[8*i - 1] < ustart[2 + i] - 4
    B7 = gr1[-1] + 3
    E.bar(B7, lg=[('G', 5)])
    free[2] = free[3] = B7 + 1
    issue(6); issue(7)
    sbg = S.asap([(o, 1, 0) for o in sb], B5 + 1)
    last = max(last, sbg[-1] + 1)
    for U in range(8, 16): issue(U)
    def outs(ps, cbs, lo=0):
        it = []
        for cb in cbs:
            for pr in range(2):
                o = vOUT + 4*((2*cb + pr) % 4); A = vA[ps] + 16*cb + 8*pr
                it += [(f"v_cvt_pk_bf16_f32 v{o+h}, v{A+2*h}, v{A+2*h+1}", 1, 0, lo + 8*cb + 4*pr) for h in range(4)]
                it.append((lambda o=o, cb=cb, pr=pr: e.vmem(f"buffer_store_dwordx4 {v(o,4)}, v{vSTO}, {s(S_P,4)}, s{sT2 + pr} offen offset:{256*cb}{cfg.sflag}", 'ST'), 2, 0))
        return it
    oa = S.chain([x[:3] for x in outs(0, range(4))], ustart[8] + 3, ustart[12])
    S.asap([(f"s_mul_i32 s{sT2}, s{sW}, 768", 1, 0), (f"s_add_u32 s{sT2}, s{sT2}, 4096", 1, 0), (f"s_add_u32 s{sT3}, s{sT2}, {4*57344}", 1, 0)], oa[-1] + 1)
    ob = outs(1, range(3), ustart[15] + 8)
    S.asap(ob[:20], ustart[15] + 8, budget=3)
    print('B3', B3, 'B35', B35, 'ck', cg[-1], 'B5', B5, 'B7', B7, 'OSL', OSL, 'epi', S.report())
    E.emit({128: lambda: tl(e, 5), 192: lambda: tl(e, 6)})
    e.nop(3)
    flat(e, [x[:3] for x in ob[20:]])
    tl_end(e, 1, 56, 57, 7)
    e("K1_END:")
    e("s_endpgm")
    main = list(e.lines)
    e("K1_FB:")
    e.nop(8)
    e(f"s_mov_b32 s{sTHR}, 0x7f800000")
    e("s_waitcnt vmcnt(0) lgkmcnt(0)")
    run(e, loop_addr_ops(cfg))
    run(e, xaddr_ops(vMW, vMR)); e(f"v_xor_b32 v47, 0x100, v{vMR}")
    for i in range(4): e(f"v_mov_b32 v{vL+i}, 0xff800000")
    e(f"s_mov_b32 s{sCNT}, 32")
    tile_offs(e)
    e("K1_FBL:")
    e("s_barrier")
    e(f"s_add_u32 s{sR[0]}, s{sR[0]}, {SLOT}"); e(f"s_and_b32 s{sR[0]}, s{sR[0]}, 0xfffff"); e(f"s_add_u32 s{sR[0]+1}, s{sR[0]}, 4096")
    flat(e, dma_items(e, cfg, S_K, 0, 0, 'K', False))
    e("s_waitcnt vmcnt(0)")
    e("s_barrier")
    for f in range(16): e(k_read(f, 0))
    e("s_waitcnt lgkmcnt(0)")
    for m in range(64): e(qk_mf(m, cfg, c0=0))
    e.nop(8)
    for kb in range(2):
        for h in range(2):
            for qb in range(4): e(f"v_max3_f32 v{vL+qb}, v{vL+qb}, v{Sr(kb,qb)+2*h}, v{Sr(kb,qb)+2*h+1}")
    e(f"s_sub_u32 s{sCNT}, s{sCNT}, 1"); e(f"s_cmp_lg_u32 s{sCNT}, 0")
    e("s_cbranch_scc1 K1_FBL")
    flat(e, dma_items(e, cfg, S_K, 1, SLOT, 'K', False)); flat(e, dma_items(e, cfg, S_V, 0, 2*SLOT, 'V', False))
    flat(e, red4([vL + i for i in range(4)], 'v_max_f32'))
    e(f"ds_write_b32 v{vMW}, v{vL}")
    for kb, t in qk0[:Bm - 448 + 1]:
        if kb: e(t)
    e.nop(8)
    e("s_waitcnt vmcnt(0) lgkmcnt(0)")
    e("s_barrier")
    e("s_branch K1_J")
    errs = check_hazards(main[:l1] + main[l0:], 'k1c') + check_hazards(e.lines[len(main):], 'k1fb')
    for x in errs[:12]: print('HAZARD', x)
    assert not errs
    return e
NAME = 'k1_kernel'
DESC = (512, 96, 256)
LAUNCH = f"grid=({GRID},1,1) block=(256,1,1) lds=163840"
```

```python
from common import *
from sch import *
GRID = 256
SLOT = 32768
MF = "v_mfma_f32_16x16x32_bf16"
S_K, S_V, S_WQ, S_WO, S_X, S_P = 8, 12, 16, 20, 24, 28
sW, sWOFF, sCNT = 3, 32, 33
sR = [34, 36]
sT0, sT1, sT2, sT3 = 40, 41, 42, 43
vL, vKA, vVA, vPW, vPR, vDK, vDV, vWA, vSTO, vNEGM, vS, vP, vO = 4, 8, 16, 32, 33, 34, 38, 42, 46, 48, 64, 96, 128
aWF = 224
sROT, sTHR, sXO = 58, 62, 63
MODB = 57344
aQ, aF, aPX, aPX2 = 0, 128, 192, 208
PXB = 4*SLOT
class Cfg:
    tmpl = (0, 1, 2, 3)
    dmacost = 2
    dflag = ''
    qkc = 8
    pvc = True
    kgaps = [98, 98, 102, 102, 106, 106, 110, 110, 130, 130, 134, 134, 138, 138, 142, 142]
    pgaps = [26, 30, 39, 47]
    b128c = 1.5
    pw64 = True
    wgaps = {(0,0): 95, (1,0): 103, (0,1): 114, (1,1): 118, (0,2): 122, (1,2): 126, (0,3): 135, (1,3): 143}
    thr = 2.0**64
    dump_q = False
    dump_o = False
    pf = True
    sflag = ' sc1'
    SM0 = 3
    abl = ()

def frag(f): return a(aF + 4 * f, 4)
def fragh(f, u): return a(aF + 4 * f + 2 * u, 2)
def Sr(kb, qb): return vS + 16 * kb + 4 * qb
def Pr(buf, qb): return vP + 16 * buf + 4 * qb

def k_read(f, slot):
    kb, ks = f >> 3, f & 7
    return f"ds_read_b128 {frag(f)}, v{vKA + ks} offset:{slot*SLOT + kb*8192}"
def v_read(f, u, slot):
    db, o = f >> 1, f & 1
    return f"ds_read_b64_tr_b16 {fragh(f, u)}, v{vVA + 8*o + db} offset:{slot*SLOT + u*8192}"
def qk_idx(m, c):
    kb, r = m >> 5, m & 31
    grp, r = r // (4*c), r % (4*c)
    return kb, grp*c + r % c, r // c
def qk_mf(m, cfg, c0=None):
    kb, ks, qb = qk_idx(m, cfg.qkc)
    d = v(Sr(kb, qb), 4)
    c = d if ks else (v(vNEGM + 4*qb, 4) if c0 is None else c0)
    return f"{MF} {d}, {frag(8*kb + ks)}, {a(aQ + 16*ks + 4*qb, 4)}, {c}"
def pv_mf(m, cfg, buf, zero=False, px=aPX):
    m -= 64
    db = m >> 3
    if cfg.pvc: qb, o = (m >> 1) & 3, m & 1
    else: qb, o = m & 3, (m >> 2) & 1
    d = v(vO + 16*db + 4*qb, 4)
    b = a(px + 4*qb, 4) if o else v(Pr(buf, qb), 4)
    return f"{MF} {d}, {frag(2*db + o)}, {b}, {0 if zero and not o else d}"

def dma_items(e, cfg, srd_, par, ldsbase, tag, adv):
    it = []
    if adv:
        it += [(f"s_add_u32 s{sR[par]}, s{sR[par]}, {2*SLOT}", 1, 0), (f"s_and_b32 s{sR[par]}, s{sR[par]}, 0xfffff", 1, 0),
               (f"s_add_u32 s{sR[par]+1}, s{sR[par]}, 4096", 1, 0)]
    for q in range(8):
        if q % 4 == 0: it.append((f"s_add_u32 m0, s{sWOFF}, {ldsbase + 4096*(q//4)}", 1, 0))
        o = f" offset:{1024*(q&3)}" if q & 3 else ""
        it.append((lambda q=q, o=o: e.vmem(f"buffer_load_dwordx4 v{(vDK if srd_ == S_K else vDV) + (q&3)}, {s(srd_,4)}, s{sR[par] + q//4} offen{o}{cfg.dflag} lds", tag), cfg.dmacost, 1 if q % 4 == 0 else 0))
    return it

def sm_ops(i, buf):
    kb, qb, r = i >> 4, (i >> 2) & 3, i & 3
    s_ = Sr(kb, qb) + r
    post = [f"v_add_f32 v{vL+qb}, v{vL+qb}, v{s_}"]
    if r & 1: post.append(f"v_cvt_pk_bf16_f32 v{Pr(buf, qb) + 2*kb + (r >> 1)}, v{s_-1}, v{s_}")
    return f"v_exp_f32 v{s_}, v{s_}", post

def build_iter(e, cfg, p, loop=False):
    S = Sched(128, 2, wrap=True)
    GE, GA, GD, GM = cfg.tmpl
    for j in range(32):
        if j >= cfg.SM0: i, buf, tag = j - cfg.SM0, p ^ 1, 'sma'
        else: i, buf, tag = j + 32 - cfg.SM0, p, 'smb'
        ex, post = sm_ops(i, buf)
        S.put(4*j + GE, ex, 2, tag)
        for o in post: S.put(4*j + GA, o, 1, tag)
        if 8 <= j < 24:
            for h in range(2): S.put(4*j + GD, lambda f=j-8, u=h: e.ds(v_read(f, u, p), ('F', f)), 1, 'vr')
    for f, g in enumerate(cfg.kgaps):
        if g < 128: S.put(g, lambda f=f: e.ds(k_read(f, p), ('F', f)), cfg.b128c, 'kr_next')
        else: S.put(g, lambda f=f: e.ds(k_read(f, p ^ 1), ('F', f)), cfg.b128c, 'kr')
        assert g >= 4*(18 + 2*(f >> 1)) - 1
    for qb, g in enumerate(cfg.pgaps):
        if cfg.pw64: S.put(g, lambda qb=qb: e.ds(f"ds_read2st64_b64 {a(aPX + 4*qb, 4)}, v{vPR} offset0:{2*qb} offset1:{2*qb+1}", 'PX'), cfg.b128c, 'pr')
        else: S.put(g, lambda qb=qb: e.ds(f"ds_read_b128 {a(aPX + 4*qb, 4)}, v{vPR} offset:{1024*qb}", 'PX'), cfg.b128c, 'pr')
    for (kb, qb), g in cfg.wgaps.items():
        assert g > 4*21 + GM and g > 4*(16*kb + 4*qb + 3 + cfg.SM0) + GA and g < 128 + 4*5
        buf, tag = (p ^ 1, 'sma') if g < 128 else (p, 'smb')
        if 'pw' in cfg.abl: continue
        if cfg.pw64: S.put(g, lambda qb=qb, buf=buf, kb=kb: e.ds(f"ds_write_b64 v{vPW}, {v(Pr(buf, qb) + 2*kb, 2)} offset:{1024*qb + 512*kb}", 'PW'), 1.5, tag)
        elif kb: S.put(g, lambda qb=qb, buf=buf: e.ds(f"ds_write_b128 v{vPW}, {v(Pr(buf, qb), 4)} offset:{1024*qb}", 'PW'), 1.5, tag)
    S.put(4*5 + GM, lambda: (e.wait(vm=['V'], lg=['PW']), e("s_barrier")), 2, 'barA')
    S.put(4*21 + GM, lambda: (e.wait(vm=['K'], lg=[('F', 6), ('F', 7)]), e("s_barrier")), 2, 'barB')
    S.waits = {0: [('F', f) for f in range(8)], 32: [('F', f) for f in range(8, 16)], 64: ['PX'] + [('F', f) for f in range(4)],
               80: [('F', f) for f in range(4, 6)], 96: [('F', f) for f in range(8, 12)], 112: [('F', f) for f in range(12, 16)]}
    for m in S.waits: S.reserve(m - 1)
    kn = dma_items(e, cfg, S_K, p ^ 1, (p ^ 1)*SLOT, 'K', True); ko = dma_items(e, cfg, S_K, p, p*SLOT, 'K', True)
    for (items, old, j0, tag) in ((dma_items(e, cfg, S_V, p ^ 1, 2*SLOT + (p ^ 1)*SLOT, 'V', False), None, 6, 'vdma'), (kn, ko, 22, 'kdma')):
        j = j0; salu = []
        for n_, (op, c, d) in enumerate(items):
            if isinstance(op, str): salu.append(op); continue
            g = 4*j + GM
            for o in salu:
                if 'm0' in o or '4096' in o: lo = 4*(j - 2) + GM + 1
                else: lo = max(4*13, getattr(S, 'lo2', 0))
                gg = S.place(o, 1, lo, g - 1, lo, tag); assert gg < 128
                S.lo2 = gg
            salu = []
            if j >= 32: S.put(g, old[n_][0], c, 'kdma_b')
            else: S.put(g, op, c, tag)
            j += 2
    if loop:
        g = S.place(f"s_sub_u32 s{sCNT}, s{sCNT}, 1", 1, 100, 126, 110, 'loop'); S.place(f"s_cmp_lg_u32 s{sCNT}, 0", 1, 124, 126, 124, 'loop')
        S.reserve(127)
    return S


def emit_iter(e, cfg, p, skip=(), zero=False, loop=False, extra=None, m0=0):
    S = build_iter(e, cfg, p, loop)
    for m in range(m0, 128):
        if m in S.waits: e.wait(lg=S.waits[m])
        e(qk_mf(m, cfg) if m < 64 else pv_mf(m, cfg, p, zero))
        for op, tag, gg in S.gap(m):
            if tag in skip or tag in cfg.abl: continue
            run(e, op)
        if extra: run(e, extra.get(m, []))
    return S

def flat(e, items):
    for op, c, d in items:
        if d: e("s_nop 0")
        run(e, op)

def loop_addr_ops(cfg):
    o = []
    t0, t1 = 'v47', 'v52'
    o += ["v_lshrrev_b32 v1, 5, v2", "v_and_b32 v3, 31, v2", f"v_lshlrev_b32 {t0}, 1, v1", f"v_xor_b32 {t1}, v3, {t0}", "v_xor_b32 v3, v3, v1"]
    for q in range(4):
        o += [f"v_xor_b32 {t0}, {4*q}, v3", f"v_lshlrev_b32 {t0}, 4, {t0}", f"v_lshl_add_u32 v{vDK+q}, v1, 9, {t0}"]
        o += [f"v_xor_b32 {t0}, {4*q}, {t1}", f"v_lshlrev_b32 {t0}, 4, {t0}", f"v_lshl_add_u32 v{vDV+q}, v1, 9, {t0}"]
    o += [f"s_and_b32 s{sT2}, s{sW}, 1", f"s_mul_i32 s{sT2}, s{sT2}, {16384+256}"]
    o += ["v_and_b32 v1, 15, v2", "v_lshlrev_b32 v1, 9, v1", f"v_add_u32 v1, s{sT2}, v1",
          "v_and_b32 v3, 6, v2", "v_lshlrev_b32 v3, 1, v3", f"v_and_b32 {t0}, 1, v2", f"v_or_b32 v3, v3, {t0}",
          f"v_bfe_u32 {t0}, v2, 4, 1", f"v_lshlrev_b32 {t0}, 1, {t0}", f"v_xor_b32 v3, v3, {t0}",
          f"v_lshrrev_b32 {t0}, 5, v2", f"v_xor_b32 v3, v3, {t0}"]
    for x in range(4):
        o += [f"v_xor_b32 {t0}, {4*x}, v3", f"v_lshl_add_u32 v{vKA+x}, {t0}, 4, v1", f"v_xor_b32 v{vKA+4+x}, 0x100, v{vKA+x}"]
    o += [f"v_lshrrev_b32 {t1}, 2, v2", f"v_lshlrev_b32 v1, 9, {t1}", f"v_add_u32 v1, s{sT2}, v1", f"v_add_u32 v1, {2*SLOT}, v1",
          f"v_and_b32 {t0}, 1, v2", f"v_lshl_add_u32 v1, {t0}, 3, v1",
          f"v_and_b32 v3, 7, {t1}", "v_lshlrev_b32 v3, 1, v3", f"v_bfe_u32 {t0}, v2, 1, 1", f"v_xor_b32 v3, v3, {t0}"]
    for y in range(8):
        o += [f"v_xor_b32 {t0}, {2*y}, v3", f"v_lshl_add_u32 v{vVA+y}, {t0}, 4, v1", f"v_xor_b32 v{vVA+8+y}, 0x4000, v{vVA+y}"]
    o += [f"s_lshl_b32 s{sT2}, s{sW}, 12", f"s_add_u32 s{sT2}, s{sT2}, {PXB}",
          f"v_lshlrev_b32 v{vPW}, 3, v2", f"v_add_u32 v{vPW}, s{sT2}, v{vPW}", f"v_xor_b32 v{vPR}, 0x1000, v{vPW}"]
    return o

def wfrag(n): return a(aWF + 4 * (n % 8), 4)
def wfragh(n, u): return a(aWF + 4 * (n % 8) + 2 * u, 2)

def unit_dma(e, voff, srd_, soff_ops, ldsbase, tag):
    it = []
    for q in range(8):
        if q % 4 == 0:
            it.append((soff_ops(q // 4), 1, 0)); it.append((f"s_add_u32 m0, s{sWOFF}, {ldsbase + 4096*(q//4)}", 1, 0))
        o = f" offset:{1024*(q&3)}" if q & 3 else ""
        it.append((lambda q=q, o=o: e.vmem(f"buffer_load_dwordx4 v{voff + (q&3)}, {s(srd_,4)}, s{sT0} offen{o} lds", tag), 2, 1 if q % 4 == 0 else 0))
    return it

def xrow(e, regs, op, tmp):
    for sw in ('v_permlane16_swap_b32', 'v_permlane32_swap_b32'):
        for i, r in enumerate(regs): e(f"v_mov_b32 v{tmp+i}, v{r}")
        if len(regs) < 3: e("s_nop 1")
        for i, r in enumerate(regs): e(f"{sw} v{r}, v{tmp+i}")
        for i, r in enumerate(regs): e(f"{op} v{r}, v{r}, v{tmp+i}")

def tile_offs(e):
    e(f"s_lshl_b32 s{sR[0]}, s6, 15"); e(f"s_add_u32 s{sR[0]}, s{sR[0]}, s{sWOFF}"); e(f"s_add_u32 s{sR[0]+1}, s{sR[0]}, 4096")
    e(f"s_add_u32 s{sR[1]}, s{sR[0]}, {SLOT}"); e(f"s_and_b32 s{sR[1]}, s{sR[1]}, 0xfffff"); e(f"s_add_u32 s{sR[1]+1}, s{sR[1]}, 4096")

def dump(e, base, n, off):
    e(f"s_lshl2_add_u32 s{sT0}, s2, s{sW}"); e(f"s_lshl_b32 s{sT0}, s{sT0}, 15"); e(f"s_add_u32 s{sT0}, s{sT0}, {off}")
    srd_off(e, 80, 56, 57, f"s{sT0}", 32768)
    e("v_lshlrev_b32 v1, 4, v2")
    for t in range(n):
        e(f"s_mov_b32 s{sT0}, {t*1024}")
        e(f"buffer_store_dwordx4 {v(base+4*t,4)}, v1, s[80:83], s{sT0} offen")
    e("s_waitcnt vmcnt(0)"); e.vm = []
```

```python
from build2 import *
import k0b, k1c, red2, mlp3, down
ALL = [k0b, k1c, red2, mlp3, down]
C = {'k0_kernel': cfg(k0b.Cfg, pf_all=False, pf_k=False), 'k1_kernel': cfg(k1c.Cfg, x0=6, w0=4)}
if __name__ == '__main__':
    build(ALL, 'best_v4.s', C)
    check('best_v4.s')
    TL.on = True
    build(ALL, 'best_v4_tl.s', C)
    check('best_v4_tl.s')
```
